```python
import torch

def _softmax(x, axis=-1):
    return torch.softmax(x, dim=axis)
def _gelu(x):
    return torch.nn.functional.gelu(x, approximate="tanh")
def _silu(x):
    return torch.nn.functional.silu(x)
def _sigmoid(x):
    return torch.sigmoid(x)
def _layernorm(x, axis=-1, eps=1e-5):
    m = x.mean(dim=axis, keepdim=True)
    v = x.var(dim=axis, keepdim=True, unbiased=False)
    return (x - m) / torch.sqrt(v + eps)
def _scatter_add(tgt, idx, src, axis=0):
    return tgt.clone().index_add_(axis, idx, src)
def _segment_sum(src, seg, n):
    out = torch.zeros((n,) + src.shape[1:], dtype=src.dtype)
    return out.index_add_(0, seg, src)
def _pad(x, pw):
    flat = tuple(v for pair in reversed(pw) for v in pair)
    return torch.nn.functional.pad(x, flat)

kernel_name = 'parallel_sum__softmax_full_mha__dense_activation_mish__prompt'

def setup_inputs():

    _w = (lambda a: (lambda t: t.to(torch.bfloat16) if t.is_floating_point() else t)(torch.as_tensor(a)))
    def _A_setup():
        B, S, D = 1, 2048, 512
        return {
            "x": _w((lambda *s: torch.randn(*s, dtype=torch.bfloat16) * 0.05)(B, S, D)),
            "wqkv": _w((lambda *s: torch.randn(*s, dtype=torch.bfloat16) * 0.05)(D, 3 * D)),
            "wo": _w((lambda *s: torch.randn(*s, dtype=torch.bfloat16) * 0.05)(D, D)),
        }
    _A_in = _A_setup()

    def _B_setup():
        B, S, D, F = 1, 2048, 512, 1792
        return {
            "x": _w((lambda *s: torch.randn(*s, dtype=torch.bfloat16) * 0.05)(B, S, D)),
            "w1": _w((lambda *s: torch.randn(*s, dtype=torch.bfloat16) * 0.8)(D, F) * (D ** -0.5)),
            "b1": _w((lambda *s: torch.randn(*s, dtype=torch.bfloat16) * 0.8)(F)),
            "w2": _w((lambda *s: torch.randn(*s, dtype=torch.bfloat16) * 0.2)(F, D) * (F ** -0.5)),
        }
    _B_in = _B_setup()

    return {
        "A_x": _A_in["x"],
        "A_wqkv": _A_in["wqkv"],
        "A_wo": _A_in["wo"],
        "B_x": _B_in["x"],
        "B_w1": _B_in["w1"],
        "B_b1": _B_in["b1"],
        "B_w2": _B_in["w2"],
    }

def reference(A_x, A_wqkv, A_wo, B_x, B_w1, B_b1, B_w2):
    def _A_ref(x, wqkv, wo):
        B, S, D = x.shape
        H = 32; Dh = D // H
        qkv = (lambda x, *d: x.permute(*d))((x @ wqkv).reshape(B, S, 3, H, Dh), 2, 0, 3, 1, 4)
        q, k, v = qkv[0], qkv[1], qkv[2]
        scale = Dh ** -0.5
        scores = torch.einsum("bhqd,bhkd->bhqk", q, k) * scale
        p = _softmax(scores, axis=-1)
        o = torch.einsum("bhqk,bhkd->bhqd", p, v)
        return (lambda x, *d: x.permute(*d))(o, 0, 2, 1, 3).reshape(B, S, D) @ wo

    def _B_ref(x, w1, b1, w2):
        h = torch.einsum("bsd,df->bsf", x, w1) + b1
        sp = torch.log1p(torch.exp(-torch.abs(h))) + torch.where(h > 0, h, torch.zeros_like(h))
        act = h * torch.tanh(sp)
        return torch.einsum("bsf,fd->bsd", act, w2)

    x = A_x
    xn = _layernorm(x, axis=-1)
    return x + _A_ref(xn, A_wqkv, A_wo) + _B_ref(xn, B_w1, B_b1, B_w2)
```

```python
import re

class Asm:
    def __init__(self):
        self.lines = []
    def __call__(self, s):
        for l in s.split("\n"):
            l = l.rstrip()
            if l.strip():
                self.lines.append(l)
    def label(self, name):
        self.lines.append(name + ":")
    def comment(self, c):
        self.lines.append("  ; " + c)
    def text(self):
        return "\n".join(self.lines) + "\n"

def vr(base, n=1):
    return f"v{base}" if n == 1 else f"v[{base}:{base+n-1}]"
def sr(base, n=1):
    return f"s{base}" if n == 1 else f"s[{base}:{base+n-1}]"

class Cnt:
    def __init__(self, maxn):
        self.q = []
        self.maxn = maxn
    def issue(self, tag):
        self.q.append(tag)
    def need(self, *tags):
        idx = -1
        for i, t in enumerate(self.q):
            if t in tags:
                idx = i
        if idx < 0:
            return None
        n = len(self.q) - 1 - idx
        self.q = self.q[idx + 1:]
        return min(n, self.maxn)
    def all(self):
        self.q = []
        return 0

REG_RE = re.compile(r"\b([vas])(\d+)\b|\b([vas])\[(\d+):(\d+)\]")
TRANS = ("v_exp_f32", "v_log_f32", "v_rcp_f32", "v_rsq_f32", "v_sqrt_f32", "v_sin_f32", "v_cos_f32", "v_exp_f16", "v_rcp_f16")

def regs_of(op):
    out = set()
    for m in REG_RE.finditer(op):
        if m.group(1):
            out.add((m.group(1), int(m.group(2))))
        else:
            for i in range(int(m.group(4)), int(m.group(5)) + 1):
                out.add((m.group(3), i))
    if re.search(r"\bvcc\b", op): out.add(("s", "vcc"))
    if re.search(r"\bexec\b", op): out.add(("s", "exec"))
    if re.search(r"\bm0\b", op): out.add(("s", "m0"))
    return out

def split_ops(rest):
    ops, depth, cur = [], 0, ""
    for ch in rest:
        if ch == "[": depth += 1
        if ch == "]": depth -= 1
        if ch == "," and depth == 0:
            ops.append(cur.strip()); cur = ""
        else:
            cur += ch
    if cur.strip(): ops.append(cur.strip())
    return ops

class Ins:
    def __init__(self, text, lineno):
        self.text = text.strip(); self.lineno = lineno
        t = self.text.split(";")[0].strip()
        p = t.split(None, 1)
        self.mn = p[0]
        rest = p[1] if len(p) > 1 else ""
        self.ops = split_ops(rest)
        mn = self.mn
        self.wr = set(); self.rd = set()
        self.cls = "other"
        base = re.sub(r"_(e32|e64|dpp|sdwa)$", "", mn)
        self.base = base
        self.ws = 1
        if mn == "s_nop":
            self.cls = "nop"; self.ws = int(self.ops[0], 0) + 1
        elif mn.startswith("v_mfma"):
            self.cls = "mfma"
            self.wr = regs_of(self.ops[0]); self.A = regs_of(self.ops[1]); self.B = regs_of(self.ops[2]); self.C = regs_of(self.ops[3].split()[0])
            self.rd = self.A | self.B | self.C
            self.passes = 8 if "32x32" in mn else 4
        elif mn.startswith("v_cmp"):
            self.cls = "valu"
            self.wr = regs_of(self.ops[0]); self.rd = set().union(*[regs_of(o) for o in self.ops[1:]])
            if mn.startswith("v_cmpx"): self.wr |= {("s", "exec")}
        elif mn.startswith("v_readfirstlane") or mn.startswith("v_readlane"):
            self.cls = "readlane"
            self.wr = regs_of(self.ops[0]); self.rd = set().union(*[regs_of(o) for o in self.ops[1:]])
        elif mn.startswith("v_permlane"):
            self.cls = "permlane"
            self.wr = regs_of(self.ops[0]) | regs_of(self.ops[1]); self.rd = set(self.wr)
        elif mn.startswith("v_"):
            self.cls = "trans" if base in TRANS else "valu"
            self.wr = regs_of(self.ops[0])
            srcs = self.ops[1:]
            if base in ("v_add_co_u32", "v_addc_co_u32", "v_sub_co_u32", "v_subb_co_u32", "v_subrev_co_u32"):
                self.wr |= regs_of(self.ops[1]); srcs = self.ops[2:]
            self.rd = set().union(*[regs_of(o) for o in srcs]) if srcs else set()
            if base in ("v_fmac_f32", "v_pk_fmac_f16", "v_dot2c_f32_bf16", "v_writelane_b32") or "UNUSED_PRESERVE" in t or "_dpp" in mn or " row_" in t or "quad_perm" in t:
                self.rd |= regs_of(self.ops[0])
            if base == "v_cndmask_b32" and len(self.ops) == 3: self.rd.add(("s", "vcc"))
            self.dpp = ("_dpp" in mn) or (" row_" in t) or ("quad_perm" in t)
        elif mn.startswith("ds_"):
            self.cls = "ds"
            if mn.startswith("ds_read") or mn.startswith("ds_bpermute") or mn.startswith("ds_swizzle") or mn.startswith("ds_permute"):
                self.wr = regs_of(self.ops[0]); self.rd = set().union(*[regs_of(o.split()[0]) for o in self.ops[1:]]) if len(self.ops)>1 else set()
            else:
                self.rd = set().union(*[regs_of(o.split()[0]) for o in self.ops])
        elif mn.startswith("buffer_") or mn.startswith("global_"):
            self.cls = "vmem"
            self.lds = bool(re.search(r"\blds\b", t)) or "load_lds" in mn
            allr = [regs_of(o.split()[0]) for o in self.ops]
            if "load" in mn and not self.lds:
                self.wr = allr[0]; self.rd = set().union(*allr[1:])
            else:
                self.rd = set().union(*allr) if allr else set()
            self.store = ("store" in mn)
            self.wide = ("x3" in mn or "x4" in mn)
            if self.lds: self.rd.add(("s", "m0"))
            if self.store:
                self.data = allr[0] if mn.startswith("buffer_") else allr[1]
        elif mn.startswith("s_"):
            self.cls = "salu"
            nowr = ("s_cmp", "s_cbranch", "s_branch", "s_waitcnt", "s_barrier", "s_endpgm", "s_setprio", "s_sleep", "s_bitcmp", "s_setpc")
            if not mn.startswith(nowr) and self.ops:
                self.wr = regs_of(self.ops[0]); self.rd = set().union(*[regs_of(o) for o in self.ops[1:]]) if len(self.ops) > 1 else set()
                if "saveexec" in mn: self.wr.add(("s", "exec"))
            else:
                self.rd = set().union(*[regs_of(o) for o in self.ops]) if self.ops else set()

def isv(rs): return {r for r in rs if r[0] in "va"}
def iss(rs): return {r for r in rs if r[0] == "s"}

def check_pair(p, c, dist):
    req = 0; why = ""
    def upd(n, w):
        nonlocal req, why
        if n > req: req, why = n, w
    pv = p.cls in ("valu", "trans", "permlane", "readlane")
    cv = c.cls in ("valu", "trans", "permlane", "readlane")
    if pv and c.cls == "mfma" and isv(p.wr) & c.rd: upd(2, "VALU->MFMA")
    if p.cls == "mfma":
        D = p.wr
        if c.cls == "mfma":
            if D & (c.A | c.B): upd(12 if p.passes == 8 else 8, "MFMA D->MFMA A/B")
            if D & c.C and not (c.C == D): upd(10 if p.passes == 8 else 6, "MFMA D->C partial")
            if D & c.wr and not (D & c.C) :
                pass
        elif cv and (D & (c.rd | c.wr)): upd(12 if p.passes == 8 else 8, "MFMA D->VALU")
        elif c.cls in ("ds", "vmem") and (D & (c.rd | c.wr)): upd(12 if p.passes == 8 else 8, "MFMA D->mem")
        if cv and (p.C & isv(c.wr)): upd(7 if p.passes == 8 else 3, "MFMA C WAR")
    if p.cls == "trans" and cv and c.cls != "trans" and (p.wr & c.rd): upd(1, "trans->VALU")
    if p.base.startswith("v_dot") if hasattr(p, "base") else False:
        if p.wr & (c.rd | c.wr):
            same = (getattr(c, "base", "") == p.base)
            if same:
                ab = regs_of(c.ops[1]) | regs_of(c.ops[2])
                if p.wr & ab: upd(3, "DOT->DOT A/B")
            else: upd(3, "DOT->other")
    if p.cls == "trans" and c.cls in ("ds","vmem") and False: pass
    if pv and c.cls == "permlane" and (isv(p.wr) & c.rd): upd(2, "VALU->permlane")
    if pv and c.cls == "valu" and getattr(c, "dpp", False) and (isv(p.wr) & c.rd): upd(2, "VALU->DPP")
    if pv and c.cls == "readlane" and (isv(p.wr) & c.rd): upd(1, "VALU->readlane")
    if pv and c.cls == "vmem" and (iss(p.wr) & c.rd): upd(5, "VALU sgpr->VMEM")
    if pv and cv and (iss(p.wr) & c.rd): upd(2, "VALU sgpr->VALU")
    if pv and c.cls == "readlane" and (iss(p.wr) & c.rd): upd(4, "VALU sgpr->lanesel")
    if p.cls == "vmem" and getattr(p, "store", False) and p.wide and cv and (p.data & c.wr): upd(2, "wide store WAR")
    if p.cls == "salu" and ("s", "m0") in p.wr and c.cls == "vmem" and c.lds: upd(1, "m0->ldsdma")
    if pv and ("s","exec") in p.wr and c.cls == "mfma": upd(4, "valu exec->mfma")
    if pv and ("s","exec") in p.wr and c.cls in ("permlane","readlane"): upd(4, "vcmpx->lane")
    return req, why

def check_hazards(text, window=24, verbose=True):
    lines = text.split("\n")
    ins = []; labels = {}
    for n, l in enumerate(lines):
        s = l.split(";")[0].strip()
        if not s or s.startswith(".") and not s.endswith(":"): continue
        if s.endswith(":"):
            labels[s[:-1]] = len(ins); continue
        ins.append(Ins(s, n + 1))
    problems = []
    def scan(seq, start_consumer=0):
        for j in range(start_consumer, len(seq)):
            c = seq[j]; dist = 0
            for i in range(j - 1, max(-1, j - 1 - window), -1):
                p = seq[i]
                if p.mn in ("s_branch", "s_endpgm", "s_setpc_b64"): break
                req, why = check_pair(p, c, dist)
                if req > dist:
                    problems.append((p.lineno, c.lineno, why, req, dist, p.text, c.text))
                dist += p.ws
                if dist >= 20: break
    scan(ins)
    for j, b in enumerate(ins):
        if b.mn.startswith("s_cbranch") or b.mn == "s_branch":
            t = labels.get(b.ops[0])
            if t is None: continue
            pre = ins[max(0, j - window):j]
            k = 0
            for q, p in enumerate(pre):
                if p.mn in ("s_branch", "s_endpgm", "s_setpc_b64"): k = q + 1
            pre = pre[k:] + [Ins("s_nop 0", b.lineno)]
            seq = pre + ins[t:t + window]
            scan(seq, len(pre))
    seen = set(); out = []
    for p in problems:
        if p[:3] in seen: continue
        seen.add(p[:3]); out.append(p)
    if verbose:
        for p in out:
            print(f"HAZARD {p[2]} need {p[3]} have {p[4]}: L{p[0]}: {p[5]}  ->  L{p[1]}: {p[6]}")
    return out
```

```python
from asmlib import *
from common import *

L_K, L_V, L_ONES, L_CMB = 0, 65536, 131072, 139264
CMB_STRIDE = 2560
ATT_LDS = L_CMB + 8 * CMB_STRIDE

QA, QB = 8, 12
SA, SB = 16, 32
OA, OB = 48, 64
KB = [80, 84]
VB = [88, 96]
vKa, vVa, vVinc, vL16 = 104, 105, 106, 107
MA, MB_ = 112, 128
sWS = 8
sHead, sQb, sW, sQg, sKh = 12, 13, 14, 15, 16
sT0, sT1, sT2, sT3 = 17, 18, 19, 20
sIt = 21

def srd_ws(a, kernarg="s[0:1]"):
    a(f"""
  s_load_dwordx2 s[4:5], {kernarg}, 72
""")

def stage(a, X, Y, kt_par, is_a, cX, cY, u, slots):
    SX = X; SY = Y
    OX = OA if is_a else OB
    OY = OB if is_a else OA
    QY = QB if is_a else QA
    cur = kt_par; nxt = kt_par ^ 1
    Vprev2 = (VB[nxt] + 4) if is_a else (VB[cur] + 4)
    Kq = KB[cur] if is_a else KB[nxt]
    V1 = VB[cur]
    E = lambda i: a(f"  v_exp_f32 v{SX+i}, v{SX+i}")
    C = lambda i: a(f"  v_cvt_pk_bf16_f32 v{SX+i}, v{SX+2*i}, v{SX+2*i+1}")
    def S(k):
        for l in slots[k]: a("  " + l)
    E(0)
    a(f"  v_cvt_pk_bf16_f32 v{SY+7}, v{SY+14}, v{SY+15}")
    E(1); E(2)
    a(f"  v_mfma_f32_32x32x16_bf16 {vr(OY,16)}, {vr(Vprev2,4)}, {vr(SY+4,4)}, {vr(OY,16)}"); S(0)
    C(0); E(3); E(4); C(1); E(5); E(6)
    a(f"  v_mfma_f32_32x32x16_bf16 {vr(SY,16)}, {vr(Kq,4)}, {vr(QY,4)}, {cY}"); S(1)
    C(2); E(7); E(8); C(3); E(9); E(10)
    a(f"  v_mfma_f32_32x32x16_bf16 {vr(OX,16)}, {vr(V1,4)}, {vr(SX,4)}, {vr(OX,16)}"); S(2)
    C(4); E(11); E(12); C(5); E(13); E(14); C(6); E(15)

MODE = "duo"
def main_loop(a, name, cA, cB, bar=True):
    U = 4
    NIT = 8 if MODE == "duo" else 16
    a(f"  s_mov_b32 s{sIt}, 0")
    a("  .p2align 6")
    a.label(f"{name}_loop")
    if bar:
        a(f"""
  s_cmp_eq_u32 s{sIt}, {1 if MODE == 'duo' else 3}
  s_cbranch_scc1 {name}_bar
""")
    a.label(f"{name}_nobar")
    for u in range(U):
        nxt = (u & 1) ^ 1
        sa = [[f"ds_read_b128 {vr(KB[nxt],4)}, v{vKa} offset:{(u+1)*1024}"],
              [f"ds_read_b128 {vr(VB[nxt],4)}, v{vVa} offset:{(u+1)*1024}"],
              [f"ds_read_b128 {vr(VB[nxt]+4,4)}, v{vVa} offset:{(u+1)*1024+512}"]]
        sb = [["s_waitcnt lgkmcnt(0)"], [], []]
        if u == U - 1:
            sb[1] = [f"s_add_u32 s{sIt}, s{sIt}, 1"]
            sb[2] = [f"s_cmp_lt_u32 s{sIt}, {NIT}"]
        stage(a, SA, SB, u & 1, True, cA, cB, u, sa)
        stage(a, SB, SA, u & 1, False, cB, cA, u, sb)
    a(f"""
  v_add_u32 v{vKa}, {U*1024}, v{vKa}
  v_add_u32 v{vVa}, v{vVinc}, v{vVa}
  s_cbranch_scc1 {name}_loop
""")
    if bar:
        a(f"  s_branch {name}_drain")
        a.label(f"{name}_bar")
        a(f"  s_waitcnt vmcnt(0)\n  s_barrier\n  s_branch {name}_nobar")
        a.label(f"{name}_drain")
    a(f"  v_cvt_pk_bf16_f32 v{SB+7}, v{SB+14}, v{SB+15}\n  s_nop 1")
    a(f"  v_mfma_f32_32x32x16_bf16 {vr(OB,16)}, {vr(VB[1]+4,4)}, {vr(SB+4,4)}, {vr(OB,16)}")

def wave_max_reduce(a, v, t):
    for ror in (8, 4, 2, 1):
        a(f"  s_nop 1\n  v_max_f32_dpp v{v}, v{v}, v{v} row_ror:{ror} row_mask:0xf bank_mask:0xf")
    a(f"  v_mov_b32 v{t}, v{v}\n  s_nop 1\n  v_permlane16_swap_b32 v{v}, v{t}\n  s_nop 1\n  v_max_f32 v{v}, v{v}, v{t}")
    a(f"  v_mov_b32 v{t}, v{v}\n  s_nop 1\n  v_permlane32_swap_b32 v{v}, v{t}\n  s_nop 1\n  v_max_f32 v{v}, v{v}, v{t}")

STAMP = False
_stamp_n = [0]
def stamp(a, idx):
    if STAMP:
        a(f"  s_memtime s[{40+2*idx}:{41+2*idx}]")
def stamp_flush(a, n):
    if not STAMP: return
    a("  s_waitcnt lgkmcnt(0)")
    a(f"  s_lshl_b32 s60, s2, 3\n  s_add_u32 s60, s60, s{sW}\n  s_lshl_b32 s60, s60, 6\n  s_add_u32 s60, s60, {SYNC_OFF}")
    for i in range(n):
        a(f"  v_mov_b32 v2, s{40+2*i}\n  v_mov_b32 v3, s{41+2*i}\n  v_mov_b32 v4, {8*i}\n  buffer_store_dwordx2 v[2:3], v4, s[{sWS}:{sWS+3}], s60 offen")

def emit_attn(a, name, standalone=True):
    a(f"""
  s_cmp_ge_u32 s2, 256
  s_cbranch_scc1 {name}_end
""")
    stamp(a, 0)
    a(f"""
  s_load_dwordx2 s[4:5], s[0:1], 72
  v_lshrrev_b32 v1, 6, v0
  v_and_b32 v0, 63, v0
  v_readfirstlane_b32 s{sW}, v1
  s_and_b32 s{sHead}, s2, 31
  s_lshr_b32 s{sQb}, s2, 5
  v_lshlrev_b32 v{vL16}, 4, v0
  s_and_b32 s{sQg}, s{sW}, 3
  s_lshr_b32 s{sKh}, s{sW}, 2
  s_waitcnt lgkmcnt(0)
  s_mov_b32 s{sWS}, s4
  s_and_b32 s{sWS+1}, s5, 0xffff
  s_mov_b32 s{sWS+2}, {WS_SIZE}
  s_mov_b32 s{sWS+3}, 0x00020000
""")
    if MODE == "duo":
        a(f"""
  s_bfe_u32 s{sT0}, s{sW}, 0x10001       ; half
  s_lshl_b32 s{sT0}, s{sT0}, 5
  s_and_b32 s{sT1}, s{sW}, 1             ; sub
  s_lshl_b32 s{sT2}, s{sT1}, 2
  s_add_u32 s{sT2}, s{sT2}, s{sT0}
""")
    else:
        a(f"""
  s_mov_b32 s{sT0}, 8
  s_and_b32 s{sT1}, s{sW}, 3             ; sub
  s_lshl_b32 s{sT2}, s{sT1}, 2
""")
    a(f"""
  s_lshl_b32 s{sT2}, s{sT2}, 10
  s_lshl_b32 s{sT3}, s{sKh}, 16
  s_add_u32 s22, s{sT2}, s{sT3}
  s_mov_b32 m0, s22
  s_lshl_b32 s23, s{sKh}, 21             ; kind*2MB
  s_lshl_b32 s24, s{sHead}, 16
  s_add_u32 s23, s23, s24
  s_add_u32 s23, s23, {KF_OFF}
  s_add_u32 s25, s23, s{sT2}
""")
    for e in range(4):
        a(f"  buffer_load_dwordx4 v{vL16}, s[{sWS}:{sWS+3}], s25 offen offset:{e*1024} lds")
    a(f"""
  s_lshl_b32 s26, s{sQb}, 3
  s_lshl_b32 s27, s{sQg}, 1
  s_add_u32 s26, s26, s27                ; tb0
  s_lshl_b32 s27, s26, 10
  s_add_u32 s27, s27, s24
  s_add_u32 s27, s27, {QF_OFF}
  buffer_load_dwordx4 {vr(QA,4)}, v{vL16}, s[{sWS}:{sWS+3}], s27 offen
  buffer_load_dwordx4 {vr(QB,4)}, v{vL16}, s[{sWS}:{sWS+3}], s27 offen offset:1024
  v_lshlrev_b32 v1, 2, v0
  s_lshr_b32 s28, s{sHead}, 2
  s_lshl_b32 s28, s28, 8
  s_add_u32 s28, s28, {NRM_OFF}
  buffer_load_dword v2, v1, s[{sWS}:{sWS+3}], s28 offen
  buffer_load_dword v3, v1, s[{sWS}:{sWS+3}], s28 offen offset:2048
  s_add_u32 s28, s28, 4096
  buffer_load_dword v4, v1, s[{sWS}:{sWS+3}], s28 offen
""")
    a(f"""
  s_mul_i32 s29, s{sT1}, 12
  s_add_u32 s29, s29, s{sT0}
  s_add_u32 s29, s29, 8
  s_lshl_b32 s29, s29, 10
""")
    for g in range(3):
        a(f"""
  s_add_u32 s22, s29, s{sT3}
  s_mov_b32 m0, s22
  s_add_u32 s25, s23, s29
""")
        for e in range(4):
            a(f"  buffer_load_dwordx4 v{vL16}, s[{sWS}:{sWS+3}], s25 offen offset:{e*1024} lds")
        if g < 2: a(f"  s_add_u32 s29, s29, 4096")
    a(f"""
  v_mov_b32 v108, 0x3f803f80
  v_mov_b32 v109, 0x3f803f80
  v_mov_b32 v110, 0x3f803f80
  v_mov_b32 v111, 0x3f803f80
  s_lshl_b32 s30, s{sW}, 10
  s_add_u32 s30, s30, {L_ONES}
  v_add_u32 v5, s30, v{vL16}
  ds_write_b128 v5, v[108:111]
  s_lshl_b32 s30, s{sKh}, 15
  {'' if MODE == 'duo' else 's_mov_b32 s30, 0'}
  v_add_u32 v{vKa}, s30, v{vL16}
  v_and_b32 v5, 31, v0                   ; t
  v_lshrrev_b32 v6, 5, v0                ; h
  v_lshlrev_b32 v7, 4, v5                ; t*16
  v_lshl_add_u32 v7, v6, 8, v7           ; + h*256
  s_add_u32 s30, s30, {L_V}
  v_add_u32 v7, s30, v7
  v_subrev_u32 v6, 20, v5                ; t-20
  v_cmp_gt_u32 vcc, 8, v6                ; t in [20,28)
  v_mov_b32 v{vVa}, {L_ONES}
  v_mov_b32 v6, {L_ONES+64}
  v_cndmask_b32 v{vVa}, v{vVa}, v6, vcc
  v_cmp_gt_u32 vcc, 16, v5
  v_mov_b32 v{vVinc}, 0
  v_mov_b32 v6, 4096
  v_cndmask_b32 v{vVa}, v{vVa}, v7, vcc
  v_cndmask_b32 v{vVinc}, v{vVinc}, v6, vcc
""")
    for r in list(range(OA, OA + 32)) + list(range(SB + 4, SB + 8)) + [SB + 14, SB + 15] + list(range(VB[1] + 4, VB[1] + 8)):
        a(f"  v_mov_b32 v{r}, 0")
    a("  s_waitcnt vmcnt(12) lgkmcnt(0)\n  s_barrier")
    stamp(a, 1)
    if MODE == "solo":
        a(f"""
  s_cmp_lt_u32 s{sW}, 4
  s_cbranch_scc1 {name}_go
  s_waitcnt vmcnt(0)
  s_barrier
  s_endpgm
""")
        a.label(f"{name}_go")
    a(f"""
  ds_read_b128 {vr(KB[0],4)}, v{vKa}
  ds_read_b128 {vr(VB[0],4)}, v{vVa}
  ds_read_b128 {vr(VB[0]+4,4)}, v{vVa} offset:512
""")
    wave_max_reduce(a, 2, 5); wave_max_reduce(a, 3, 5); wave_max_reduce(a, 4, 5)
    a(f"""
  v_mul_f32 v2, v2, v3
  v_mov_b32 v5, 0x45700000             ; 3840 = 4096/1.067
  v_mov_b32 v6, 0x53800000             ; 2^40
  v_cmp_le_f32 vcc, v2, v5
  v_cmp_le_f32 s[30:31], v4, v6
  s_nop 4
  s_and_b64 vcc, vcc, s[30:31]
  s_cmp_eq_u64 vcc, exec
  s_waitcnt lgkmcnt(0)
  s_cbranch_scc0 {name}_slow
""")
    a(f"  v_mfma_f32_32x32x16_bf16 {vr(SA,16)}, {vr(KB[0],4)}, {vr(QA,4)}, 0")
    a("  s_nop 7\n  s_nop 3")
    stamp(a, 2)
    main_loop(a, name + "_f", "0", "0")
    stamp(a, 3)
    a(f"  s_branch {name}_epi")
    a.label(f"{name}_slow")
    a(f"""
  s_waitcnt vmcnt(0)
  s_barrier
  v_mov_b32 v2, 0xff800000
  v_mov_b32 v3, 0xff800000
  v_mov_b32 v4, v{vKa}
  s_mov_b32 s{sIt}, 0
""")
    a.label(f"{name}_mx")
    a(f"""
  ds_read_b128 {vr(KB[1],4)}, v4
  v_add_u32 v4, 1024, v4
  s_waitcnt lgkmcnt(0)
  v_mfma_f32_32x32x16_bf16 {vr(SA,16)}, {vr(KB[1],4)}, {vr(QA,4)}, 0
  v_mfma_f32_32x32x16_bf16 {vr(MA,16)}, {vr(KB[1],4)}, {vr(QB,4)}, 0
  s_nop 15
""")
    for i in range(8): a(f"  v_max3_f32 v2, v2, v{SA+2*i}, v{SA+2*i+1}")
    for i in range(8): a(f"  v_max3_f32 v3, v3, v{MA+2*i}, v{MA+2*i+1}")
    a(f"""
  s_add_u32 s{sIt}, s{sIt}, 1
  s_cmp_lt_u32 s{sIt}, {32 if MODE == 'duo' else 64}
  s_cbranch_scc1 {name}_mx
""")
    for v in (2, 3):
        a(f"  v_mov_b32 v5, v{v}\n  s_nop 1\n  v_permlane32_swap_b32 v{v}, v5\n  s_nop 1\n  v_max_f32 v{v}, v{v}, v5")
    if MODE == 'duo':
        a(f"""
  s_mul_i32 s30, s{sW}, {CMB_STRIDE}
  s_add_u32 s30, s30, {L_CMB}
  v_lshlrev_b32 v5, 3, v0
  v_add_u32 v6, s30, v5
  ds_write_b64 v6, v[2:3]
  s_xor_b32 s31, s{sW}, 4
  s_mul_i32 s31, s31, {CMB_STRIDE}
  s_add_u32 s31, s31, {L_CMB}
  v_add_u32 v6, s31, v5
  s_waitcnt lgkmcnt(0)
  s_barrier
  ds_read_b64 v[6:7], v6
  s_waitcnt lgkmcnt(0)
  v_max_f32 v2, v2, v6
  v_max_f32 v3, v3, v7
""")
    for i in range(16):
        a(f"  v_sub_f32 v{MA+i}, 0, v2\n  v_sub_f32 v{MB_+i}, 0, v3")
    if MODE == "duo": a("  s_barrier")
    a(f"  s_nop 1\n  v_mfma_f32_32x32x16_bf16 {vr(SA,16)}, {vr(KB[0],4)}, {vr(QA,4)}, {vr(MA,16)}")
    a("  s_nop 7\n  s_nop 3")
    main_loop(a, name + "_s", vr(MA, 16), vr(MB_, 16), bar=False)
    a.label(f"{name}_epi")
    if MODE == "duo":
        a(f"""
  s_mul_i32 s30, s{sW}, {CMB_STRIDE}
  s_add_u32 s30, s30, {L_CMB}
  v_add_u32 v5, s30, v{vL16}
  s_xor_b32 s31, s{sW}, 4
  s_mul_i32 s31, s31, {CMB_STRIDE}
  s_add_u32 s31, s31, {L_CMB}
  v_add_u32 v6, s31, v{vL16}
  v_lshlrev_b32 v7, 2, v0
  v_add_u32 v2, s30, v7
  v_add_u32 v3, s31, v7
  s_cmp_eq_u32 s{sKh}, 0
  s_cbranch_scc1 {name}_epi0
""")
        def comb(send, keep, lab_next):
            a("  s_nop 7\n  s_nop 3")
            a(f"""
  ds_write_b128 v5, {vr(send,4)}
  ds_write_b128 v5, {vr(send+4,4)} offset:1024
  ds_write_b32 v2, v{send+8} offset:2048
  s_waitcnt lgkmcnt(0)
  s_barrier
  ds_read_b128 v[80:83], v6
  ds_read_b128 v[84:87], v6 offset:1024
  ds_read_b32 v88, v3 offset:2048
  s_waitcnt lgkmcnt(0)
""")
            for i in range(9): a(f"  v_add_f32 v{80+i}, v{80+i}, v{keep+i}")
        comb(OA, OB, None)
        a(f"  s_branch {name}_epi1")
        a.label(f"{name}_epi0")
        comb(OB, OA, None)
        a.label(f"{name}_epi1")
        a("  v_rcp_f32 v88, v88\n  s_nop 0")
        for i in range(8): a(f"  v_mul_f32 v{80+i}, v{80+i}, v88")
        for i in range(4): a(f"  v_cvt_pk_bf16_f32 v{80+i}, v{80+2*i}, v{80+2*i+1}")
        a(f"""
  s_add_u32 s26, s26, s{sKh}             ; tb
  s_mul_i32 s27, s26, 144
  s_add_u32 s27, s27, s{sHead}
  s_add_u32 s27, s27, 112
  s_lshl_b32 s27, s27, 10
  s_add_u32 s27, s27, {AOF_OFF}
  buffer_store_dwordx4 v[80:83], v{vL16}, s[{sWS}:{sWS+3}], s27 offen
""")

    else:
        a("  s_nop 7\n  s_nop 3")
        a(f"""
  s_mul_i32 s27, s26, 144
  s_add_u32 s27, s27, s{sHead}
  s_add_u32 s27, s27, 112
  s_lshl_b32 s27, s27, 10
  s_add_u32 s27, s27, {AOF_OFF}
  s_add_u32 s28, s27, {144*1024}
""")
        for (O, so) in ((OA, 27), (OB, 28)):
            a(f"  v_rcp_f32 v{O+8}, v{O+8}\n  s_nop 0")
            for i in range(8): a(f"  v_mul_f32 v{O+i}, v{O+i}, v{O+8}")
            for i in range(4): a(f"  v_cvt_pk_bf16_f32 v{O+i}, v{O+2*i}, v{O+2*i+1}")
            a(f"  buffer_store_dwordx4 {vr(O,4)}, v{vL16}, s[{sWS}:{sWS+3}], s{so} offen")
    stamp(a, 4)
    stamp_flush(a, 5)
    a.label(f"{name}_end")
    a("  s_endpgm")
```

```python
KNAME = "parallel_sum__softmax_full_mha__dense_activation_mish__prompt"
MB = 1 << 20
QF_OFF  = 0
KF_OFF  = 2 * MB
VF_OFF  = 4 * MB
NRM_OFF = 6 * MB
WF_OFF  = 7 * MB
AOF_OFF = 10 * MB
SYNC_OFF = 20 * MB
WS_SIZE = 268435456
QSCALE = 0.25 * 1.4426950408889634
```

```python
from asmlib import *
from common import *

XR, WR = 0, 65536
L_STAT = 131072
L_CSW  = L_STAT + 2048
L_RSM  = L_CSW + 2048
K1_LDS = L_RSM + 2048
vX0, vX1, vWd0, vWd1, vPd0, vPd1 = 2, 3, 4, 5, 6, 7
vXa = [8, 9, 10, 11]
vWa = [12, 13]
vWp = [14, 15]
vL16 = 16
vNmu, vRs, vNmax = 18, 20, 22
CS, BI = 32, 48
ACC = [64, 80]
WB = [96, 100, 104, 108]
vCs = [112, 113]
vSum, vSq, vOnes = 114, 115, 116
vC2, vCm2, vLg = 118, 120, 122
XF = 128
sX, sW, sW1, sWS, sB1, sWT = 8, 12, 16, 20, 24, 28
pX, pWqkv, pWo, pBx, pW1, pB1, pW2, pOut, pDbg, pWs = 36, 38, 40, 42, 44, 46, 48, 50, 52, 54
sWv, sTbl, sHalf, sRt, sJ, sTy, sTb = 56, 57, 58, 59, 60, 61, 62
sXs, sXm, sWs_, sWm, sPitch64 = 63, 64, 65, 66, 67
sPs, sPm, sSs = 68, 69, 70
sT = [72, 73, 74, 75, 76, 77, 78, 79]
sTst = 80
sF0 = 81
LOG2E = 0x3fb8aa3b

def srd(a, s, ptr, size):
    a(f"  s_mov_b32 s{s}, s{ptr}\n  s_and_b32 s{s+1}, s{ptr+1}, 0xffff\n  s_mov_b32 s{s+2}, {size}\n  s_mov_b32 s{s+3}, 0x00020000")

def xhalf_add(a, v, t):
    a(f"  v_mov_b32 v{t}, v{v}\n  s_nop 1\n  v_permlane32_swap_b32 v{v}, v{t}\n  s_nop 1\n  v_add_f32 v{v}, v{v}, v{t}")

def wave_max_reduce(a, v, t):
    for ror in (8, 4, 2, 1):
        a(f"  s_nop 1\n  v_max_f32_dpp v{v}, v{v}, v{v} row_ror:{ror} row_mask:0xf bank_mask:0xf")
    a(f"  v_mov_b32 v{t}, v{v}\n  s_nop 1\n  v_permlane16_swap_b32 v{v}, v{t}\n  s_nop 1\n  v_max_f32 v{v}, v{v}, v{t}")
    a(f"  v_mov_b32 v{t}, v{v}\n  s_nop 1\n  v_permlane32_swap_b32 v{v}, v{t}\n  s_nop 1\n  v_max_f32 v{v}, v{v}, v{t}")

DEBUG = False
STAMP = False
SB0 = 84
def stamp(a, i, real=False):
    if STAMP: a(f"  {'s_memrealtime' if real else 's_memtime'} s[{SB0+2*i}:{SB0+2*i+1}]")
def stamp_flush(a, n, kidx, sW, srdws):
    if not STAMP: return
    a("  s_waitcnt lgkmcnt(0)")
    a(f"  s_lshl_b32 s82, s2, 3\n  s_add_u32 s82, s82, s{sW}\n  s_lshl_b32 s82, s82, 7\n  s_add_u32 s82, s82, {SYNC_OFF + kidx*262144}")
    for i in range(n):
        a(f"  v_mov_b32 v2, s{SB0+2*i}\n  v_mov_b32 v3, s{SB0+2*i+1}\n  v_mov_b32 v4, {8*i}\n  buffer_store_dwordx2 v[2:3], v4, s[{srdws}:{srdws+3}], s82 offen")
class K1:
    def __init__(self, a, name):
        self.a = a; self.name = name; self.vm = Cnt(63)

    def dma_chunk(self, c):
        a = self.a; slot = c & 3
        a(f"  s_add_u32 m0, s{sXm}, {XR + slot*16384}")
        a(f"  s_add_u32 s{sT[0]}, s{sXs}, {c*128}")
        a(f"  buffer_load_dwordx4 v{vX0}, s[{sX}:{sX+3}], s{sT[0]} offen lds")
        a(f"  buffer_load_dwordx4 v{vX1}, s[{sX}:{sX+3}], s{sT[0]} offen offset:1024 lds")
        a(f"  s_add_u32 m0, s{sWm}, {WR + slot*16384}")
        a(f"  s_nop 0")
        a(f"  buffer_load_dwordx4 v{vWd0}, s[{sW}:{sW+3}], s{sWs_} offen lds")
        a(f"  buffer_load_dwordx4 v{vWd1}, s[{sW}:{sW+3}], s{sWs_} offen offset:1024 lds")
        a(f"  s_add_u32 s{sWs_}, s{sWs_}, s{sPitch64}")
        for _ in range(4): self.vm.issue(("c", c))
    def dma_piece(self, q):
        a = self.a
        a(f"  s_add_u32 m0, s{sPm}, {WR + q*16384}")
        a(f"  s_add_u32 s{sT[0]}, s{sPs}, {q*128*3584}")
        a(f"  buffer_load_dwordx4 v{vPd0}, s[{sW1}:{sW1+3}], s{sT[0]} offen lds")
        a(f"  buffer_load_dwordx4 v{vPd1}, s[{sW1}:{sW1+3}], s{sT[0]} offen offset:1024 lds")
        a(f"  s_add_u32 m0, s{sPm}, {XR + q*16384}")
        a(f"  s_add_u32 s{sT[0]}, s{sSs}, {q*128*3584}")
        a(f"  buffer_load_dwordx4 v{vPd0}, s[{sW1}:{sW1+3}], s{sT[0]} offen lds")
        a(f"  buffer_load_dwordx4 v{vPd1}, s[{sW1}:{sW1+3}], s{sT[0]} offen offset:1024 lds")
        for _ in range(4): self.vm.issue(("p", q))
    def wait_vm(self, *tags, extra=""):
        n = self.vm.need(*tags)
        if n is not None: self.a(f"  s_waitcnt vmcnt({n}){extra}")

    def prologue(self):
        a = self.a; n = self.name
        a(f"""
  s_cmp_ge_u32 s2, 256
  s_cbranch_scc1 {n}_end
""")
        stamp(a, 0, True); stamp(a, 1)
        a(f"""
  s_load_dwordx16 s[36:51], s[0:1], 0
  s_load_dwordx4 s[52:55], s[0:1], 64
  v_lshrrev_b32 v1, 6, v0
  v_and_b32 v0, 63, v0
  v_readfirstlane_b32 s{sWv}, v1
  v_lshlrev_b32 v{vL16}, 4, v0
  s_and_b32 s{sT[0]}, s2, 7              ; xcd
  s_lshr_b32 s{sT[1]}, s2, 3             ; s
  s_and_b32 s{sRt}, s{sT[0]}, 1
  s_lshl_b32 s{sRt}, s{sRt}, 3
  s_and_b32 s{sT[2]}, s{sT[1]}, 7
  s_add_u32 s{sRt}, s{sRt}, s{sT[2]}     ; rt
  s_lshr_b32 s{sT[2]}, s{sT[0]}, 1
  s_lshl_b32 s{sT[2]}, s{sT[2]}, 2
  s_lshr_b32 s{sT[3]}, s{sT[1]}, 3
  s_add_u32 s{sT[2]}, s{sT[2]}, s{sT[3]} ; g
  s_and_b32 s{sTy}, s{sT[2]}, 1
  s_lshr_b32 s{sJ}, s{sT[2]}, 1
  s_and_b32 s{sTbl}, s{sWv}, 3
  s_lshr_b32 s{sHalf}, s{sWv}, 2
  s_lshl_b32 s{sTb}, s{sRt}, 2
  s_add_u32 s{sTb}, s{sTb}, s{sTbl}
""")
        a(f"""
  v_lshrrev_b32 v24, 3, v0               ; i>>3
  v_and_b32 v25, 7, v0                   ; i&7
  v_lshrrev_b32 v26, 4, v0               ; i>>4
  v_xor_b32 v27, v25, v26                ; x piece (e=0)
  v_lshlrev_b32 v27, 4, v27
  v_lshl_add_u32 v{vX0}, v24, 10, v27
  v_xor_b32 v{vX1}, 64, v{vX0}
  v_add_u32 v{vX1}, {8192-1024}, v{vX1}
  v_and_b32 v26, 1, v26
  v_lshlrev_b32 v26, 2, v26
  v_xor_b32 v27, v25, v26                ; W piece
  v_lshlrev_b32 v27, 4, v27              ; *16
  s_mov_b32 s{sT[0]}, 3584
  v_mul_lo_u32 v28, v24, s{sT[0]}
  v_add_u32 v{vPd0}, v28, v27
  v_add_u32 v{vPd1}, {8*3584-1024}, v{vPd0}
""")
        a(f"""
  s_lshr_b32 s{sT[0]}, s{sJ}, 1
  s_mul_i32 s{sT[0]}, s{sT[0]}, 896      ; 896*m
  s_and_b32 s{sT[1]}, s{sJ}, 1
  s_lshl_b32 s{sT[2]}, s{sT[1]}, 9
  s_add_u32 s{sT[2]}, s{sT[2]}, s{sT[0]} ; lineoff
  s_add_u32 s{sT[3]}, s{sT[0]}, 384
  s_mov_b32 s{sF0}, s{sT[2]}
  s_mov_b32 s{sF0+1}, s{sT[3]}
  s_lshl_b32 s{sT[4]}, s{sJ}, 7          ; 128j
  s_lshl_b32 s{sT[5]}, s{sHalf}, 10
  s_add_u32 s{sT[5]}, s{sT[5]}, s{sT[4]}
  s_add_u32 s{sT[6]}, s{sT[4]}, 2048     ; Y half0
  s_add_u32 s{sT[7]}, s{sT[2]}, 128      ; Y half1 (w1)
  s_cmp_eq_u32 s{sHalf}, 0
  s_cselect_b32 s{sT[6]}, s{sT[6]}, s{sT[7]}
  s_cmp_eq_u32 s{sTy}, 0
  s_cselect_b32 s{sT[5]}, s{sT[5]}, s{sT[6]}
  s_and_b32 s{sT[6]}, s{sTy}, s{sHalf}
  s_cmp_eq_u32 s{sT[6]}, 1
  s_movk_i32 s{sT[7]}, 3072
  s_cselect_b32 s{sT[7]}, 3584, s{sT[7]}     ; pitch
  s_lshl_b32 s{sPitch64}, s{sT[7]}, 6
  s_lshl_b32 s{sWs_}, s{sTbl}, 4
  s_mul_i32 s{sWs_}, s{sWs_}, s{sT[7]}
  s_add_u32 s{sWs_}, s{sWs_}, s{sT[5]}
  v_mul_lo_u32 v28, v24, s{sT[7]}
  v_add_u32 v{vWd0}, v28, v27
  s_lshl_b32 s{sT[7]}, s{sT[7]}, 3
  s_sub_u32 s{sT[7]}, s{sT[7]}, 1024
  v_add_u32 v{vWd1}, s{sT[7]}, v{vWd0}
  s_lshl_b32 s{sXm}, s{sWv}, 11          ; 16w*128
  s_lshl_b32 s{sWm}, s{sTbl}, 11
  s_lshl_b32 s{sT[7]}, s{sHalf}, 13
  s_add_u32 s{sWm}, s{sWm}, s{sT[7]}
  s_mov_b32 s{sPm}, s{sXm}
  s_lshl_b32 s{sXs}, s{sRt}, 17
  s_lshl_b32 s{sT[7]}, s{sWv}, 14
  s_add_u32 s{sXs}, s{sXs}, s{sT[7]}
  s_mul_i32 s{sT[7]}, s{sWv}, {16*3584}
  s_add_u32 s{sT[5]}, s{sT[2]}, 256
  s_cmp_eq_u32 s{sTy}, 0
  s_cselect_b32 s{sPs}, s{sT[2]}, s{sT[5]}
  s_cselect_b32 s{sSs}, s{sT[3]}, 0x10000000
  s_add_u32 s{sPs}, s{sPs}, s{sT[7]}
  s_add_u32 s{sSs}, s{sSs}, s{sT[7]}
""")
        a("  s_waitcnt lgkmcnt(0)")
        srd(a, sX, pX, 2097152)
        a(f"""
  s_cmp_eq_u32 s{sT[6]}, 1
  s_cselect_b32 s{sW}, s{pW1}, s{pWqkv}
  s_cselect_b32 s{sW+1}, s{pW1+1}, s{pWqkv+1}
  s_mov_b32 s{sW+2}, 1572864
  s_cselect_b32 s{sW+2}, 1835008, s{sW+2}
  s_and_b32 s{sW+1}, s{sW+1}, 0xffff
  s_mov_b32 s{sW+3}, 0x00020000
""")
        for c in range(4): self.dma_chunk(c)
        srd(a, sW1, pW1, 1835008); srd(a, sWS, pWs, WS_SIZE); srd(a, sB1, pB1, 3584)
        a(f"""
  s_lshl_b32 s{sT[0]}, s{sWv}, 8
  s_add_u32 s{sT[0]}, s{sT[0]}, s2       ; u
  s_lshr_b32 s{sT[1]}, s{sT[0]}, 3       ; ks
  s_and_b32 s{sT[2]}, s{sT[0]}, 7        ; nbp
  s_cmp_lt_u32 s{sT[1]}, 112
  s_cselect_b32 s{sWT}, s{pW2}, s{pWo}
  s_cselect_b32 s{sWT+1}, s{pW2+1}, s{pWo+1}
  s_mov_b32 s{sWT+2}, 524288
  s_cselect_b32 s{sWT+2}, 1835008, s{sWT+2}
  s_cselect_b32 s{sT[3]}, 0, 112
  s_and_b32 s{sWT+1}, s{sWT+1}, 0xffff
  s_mov_b32 s{sWT+3}, 0x00020000
  s_sub_u32 s{sT[3]}, s{sT[1]}, s{sT[3]}
  s_lshl_b32 s{sT[3]}, s{sT[3]}, 14      ; row0*1024
  s_lshl_b32 s{sT[4]}, s{sT[2]}, 7
  s_add_u32 s{sT[3]}, s{sT[3]}, s{sT[4]}
  s_mul_i32 s{sTst}, s{sT[2]}, 288
  s_add_u32 s{sTst}, s{sTst}, s{sT[1]}
  s_lshl_b32 s{sTst}, s{sTst}, 10
  s_add_u32 s{sTst}, s{sTst}, {WF_OFF}
  s_cmp_lt_u32 s{sT[0]}, 1152
  s_cselect_b32 s{sTst}, s{sTst}, 0x20000000
  s_cselect_b32 s{sT[3]}, s{sT[3]}, 0x20000000
  v_and_b32 v24, 31, v0                  ; t
  v_lshrrev_b32 v25, 5, v0               ; h
  v_lshlrev_b32 v26, 1, v24
  v_lshl_add_u32 v26, v25, 12, v26       ; 4h*1024 + 2t
""")
        for j in range(8):
            row = (j & 3) + 8 * (j >> 2)
            a(f"  s_add_u32 s{sT[4]}, s{sT[3]}, {row*1024}")
            a(f"  buffer_load_ushort v{BI+j}, v26, s[{sWT}:{sWT+3}], s{sT[4]} offen")
            a(f"  buffer_load_ushort v{BI+8+j}, v26, s[{sWT}:{sWT+3}], s{sT[4]} offen offset:64")
            self.vm.issue("T"); self.vm.issue("T")
        a(f"""
  v_lshrrev_b32 v26, 1, v24
  v_and_b32 v26, 7, v26                  ; sw=(t>>1)&7
  v_xor_b32 v26, v26, v25                ; h^sw
  s_lshl_b32 s{sT[0]}, s{sTbl}, 12       ; 32*tbl*128
  v_lshlrev_b32 v27, 7, v24              ; t*128
  v_add_u32 v27, s{sT[0]}, v27
""")
        for s in range(4):
            a(f"  v_xor_b32 v28, {2*s}, v26\n  v_lshl_add_u32 v{vXa[s]}, v28, 4, v27")
        a(f"""
  v_lshrrev_b32 v26, 4, v0               ; g4
  v_and_b32 v27, 1, v26                  ; nh
  v_lshrrev_b32 v26, 1, v26              ; h
  v_and_b32 v28, 15, v0
  v_lshrrev_b32 v29, 2, v28              ; r
  v_and_b32 v28, 3, v28                  ; cc
  v_lshl_add_u32 v30, v26, 3, v29        ; 8h+r
  v_lshlrev_b32 v30, 7, v30              ; *128
  v_lshl_add_u32 v30, v27, 5, v30        ; + nh*32
  v_lshl_add_u32 v30, v28, 3, v30        ; + cc*8
  v_lshrrev_b32 v29, 1, v29
  v_and_b32 v29, 1, v29
  v_lshl_add_u32 v30, v29, 6, v30        ; + ((r>>1)&1)*64   (hb=0)
  v_add_u32 v{vWp[0]}, {WR}, v30
  v_xor_b32 v{vWp[1]}, 64, v{vWp[0]}
  s_lshl_b32 s{sT[0]}, s{sHalf}, 13
  v_add_u32 v{vWa[0]}, s{sT[0]}, v{vWp[0]}
  v_add_u32 v{vWa[1]}, s{sT[0]}, v{vWp[1]}
  v_mov_b32 v{vOnes}, 0x3f803f80
  v_mov_b32 v{vC2}, 2.0
  v_mov_b32 v{vCm2}, -2.0
  v_mov_b32 v{vLg}, {LOG2E}
  v_mov_b32 v{vNmax}, 0
""")
        for r in list(range(ACC[0], ACC[0] + 32)) + vCs + [vSum, vSq]:
            a(f"  v_mov_b32 v{r}, 0")

    def tr(self, dst, addr, off):
        self.a(f"  ds_read_b64_tr_b16 {vr(dst,2)}, v{addr} offset:{off}")
        self.a(f"  ds_read_b64_tr_b16 {vr(dst+2,2)}, v{addr} offset:{off+512}")

    def wf_finish(self):
        a = self.a
        for b in range(2):
            for i in range(4):
                a(f"  v_lshl_or_b32 v{BI+8*b+i}, v{BI+8*b+2*i+1}, 16, v{BI+8*b+2*i}")
        a(f"  buffer_store_dwordx4 {vr(BI,4)}, v{vL16}, s[{sWS}:{sWS+3}], s{sTst} offen")
        a(f"  s_add_u32 s{sTst}, s{sTst}, {144*1024}")
        a(f"  buffer_store_dwordx4 {vr(BI+8,4)}, v{vL16}, s[{sWS}:{sWS+3}], s{sTst} offen")
        self.vm.issue("st"); self.vm.issue("st")

    def pass1(self, orient):
        a = self.a; n = f"{self.name}_{orient}"
        def group(c, s):
            slot = c & 3; buf = (s & 1) * 2
            a(f"  ds_read_b128 {vr(XF+4*(4*c+s),4)}, v{vXa[s]} offset:{XR+slot*16384}")
            self.tr(WB[buf], vWa[0], slot*16384 + s*2048)
            self.tr(WB[buf+1], vWa[1], slot*16384 + s*2048)
        for c in range(8):
            self.wait_vm(("c", c))
            a("  s_barrier")
            if c == 0: stamp(a, 2)
            if c == 4: stamp(a, 3)
            if 1 <= c <= 4: self.dma_chunk(c + 3)
            if c >= 5: self.dma_piece(c - 5)
            if c == 4:
                self.wait_vm("T"); self.wf_finish()
            group(c, 0); group(c, 1)
            for s in range(4):
                buf = (s & 1) * 2; xf = XF + 4 * (4 * c + s)
                a(f"  s_waitcnt lgkmcnt({5 if s < 3 else 0})")
                for b in range(2):
                    for i in range(4):
                        a(f"  v_dot2_f32_bf16 v{vCs[b]}, v{WB[buf+b]+i}, v{vOnes}, v{vCs[b]}")
                for b in range(2):
                    A, B = (WB[buf+b], xf) if orient == "T" else (xf, WB[buf+b])
                    a(f"  v_mfma_f32_32x32x16_bf16 {vr(ACC[b],16)}, {vr(A,4)}, {vr(B,4)}, {vr(ACC[b],16)}")
                if s + 2 <= 3: group(c, s + 2)
            a(f"  s_cmp_eq_u32 s{sHalf}, {c & 1}\n  s_cbranch_scc0 {n}_ns{c}")
            for r in range(XF + 16 * c, XF + 16 * c + 16):
                a(f"  v_dot2_f32_bf16 v{vSum}, v{r}, v{vOnes}, v{vSum}")
                a(f"  v_dot2_f32_bf16 v{vSq}, v{r}, v{r}, v{vSq}")
            a.label(f"{n}_ns{c}")

    def stats(self):
        a = self.a
        stamp(a, 4)
        a("  s_nop 2")
        xhalf_add(a, vSum, 24); xhalf_add(a, vSq, 24); xhalf_add(a, vCs[0], 24); xhalf_add(a, vCs[1], 24)
        a(f"""
  v_and_b32 v24, 31, v0
  s_lshl_b32 s{sT[0]}, s{sWv}, 8
  s_add_u32 s{sT[1]}, s{sT[0]}, {L_STAT}
  v_lshl_add_u32 v25, v24, 3, s{sT[1]}
  ds_write_b64 v25, v[{vSum}:{vSum+1}]
  s_add_u32 s{sT[1]}, s{sT[0]}, {L_CSW}
  v_lshl_add_u32 v26, v24, 2, s{sT[1]}
  ds_write_b32 v26, v{vCs[0]}
  ds_write_b32 v26, v{vCs[1]} offset:128
  s_xor_b32 s{sT[1]}, s{sT[0]}, 1024
  s_add_u32 s{sT[1]}, s{sT[1]}, {L_STAT}
  v_lshl_add_u32 v25, v24, 3, s{sT[1]}
  s_waitcnt lgkmcnt(0)
  s_barrier
""")
        self.dma_piece(3)
        a(f"""
  ds_read_b64 v[24:25], v25
  s_waitcnt lgkmcnt(0)
  v_add_f32 v{vSum}, v{vSum}, v24
  v_add_f32 v{vSq}, v{vSq}, v25
  v_mul_f32 v{vSum}, 0x3b000000, v{vSum}        ; mean
  v_mul_f32 v{vSq}, 0x3b000000, v{vSq}
  v_fma_f32 v{vSq}, -v{vSum}, v{vSum}, v{vSq}   ; var
  v_max_f32 v{vSq}, 0, v{vSq}
  v_add_f32 v{vSq}, 0x3727c5ac, v{vSq}          ; + 1e-5
  v_rsq_f32 v{vRs}, v{vSq}
  v_sub_f32 v{vNmu}, 0, v{vSum}
  v_mul_f32 v{vRs+1}, v{vSum}, v{vRs}
""")

    def load_cs(self, blk):
        a = self.a
        a(f"""
  v_lshrrev_b32 v24, 5, v0
  s_lshl_b32 s{sT[0]}, s{sWv}, 8
  s_add_u32 s{sT[0]}, s{sT[0]}, {L_CSW + blk*128}
  v_lshl_add_u32 v24, v24, 4, s{sT[0]}
""")
        for g in range(4): a(f"  ds_read_b128 {vr(CS+4*g,4)}, v24 offset:{g*32}")

    def bias_issue(self, sf):
        a = self.a
        a(f"  v_lshrrev_b32 v23, 5, v0\n  v_lshlrev_b32 v23, 3, v23\n  s_lshl_b32 s{sT[1]}, s{sf}, 1")
        for g in range(4):
            a(f"  buffer_load_dwordx2 {vr(24+2*g,2)}, v23, s[{sB1}:{sB1+3}], s{sT[1]} offen offset:{g*16}")
            self.vm.issue("bias")
    def bias_finish(self):
        a = self.a
        self.wait_vm("bias")
        for g in range(4):
            for i in range(2):
                a(f"  v_lshlrev_b32 v{BI+4*g+2*i}, 16, v{24+2*g+i}\n  v_and_b32 v{BI+4*g+2*i+1}, 0xffff0000, v{24+2*g+i}")

    def fix_T(self, acc):
        for i in range(8):
            self.a(f"  v_pk_fma_f32 {vr(acc+2*i,2)}, {vr(CS+2*i,2)}, {vr(vNmu,2)}, {vr(acc+2*i,2)} op_sel_hi:[1,0,1]")

    def E_qk(self, acc, blk, kind):
        a = self.a
        self.load_cs(blk)
        if kind == 0: a(f"  v_mul_f32 v30, 0x{__import__('struct').unpack('<I', __import__('struct').pack('<f', QSCALE))[0]:08x}, v{vRs}")
        else: a(f"  v_mov_b32 v30, v{vRs}")
        a(f"""
  s_lshl_b32 s{sT[1]}, s{sJ}, 2
  s_add_u32 s{sT[1]}, s{sT[1]}, {2*blk}
  s_lshl_b32 s{sT[1]}, s{sT[1]}, 16
  s_lshl_b32 s{sT[2]}, s{sTb}, 10
  s_add_u32 s{sT[1]}, s{sT[1]}, s{sT[2]}
  s_add_u32 s{sT[1]}, s{sT[1]}, {QF_OFF if kind == 0 else KF_OFF}
  s_add_u32 s{sT[2]}, s{sT[1]}, 65536
  s_waitcnt lgkmcnt(0)
""")
        if DEBUG and kind == 1 and blk == 0:
            a(f"  s_lshl_b32 s{sT[3]}, s2, 2\n  s_add_u32 s{sT[3]}, s{sT[3]}, s{sTbl}\n  s_mul_i32 s{sT[3]}, s{sT[3]}, {20*256}\n  s_add_u32 s{sT[3]}, s{sT[3]}, {SYNC_OFF}\n  v_lshlrev_b32 v24, 2, v0")
            for i, r in enumerate([vNmu, vRs, vSum, vSq] + list(range(CS, CS + 16))):
                a(f"  buffer_store_dword v{r}, v24, s[{sWS}:{sWS+3}], s{sT[3]} offen offset:{i*256 if i < 16 else 0}") if i < 16 else None
                self.vm.issue("st") if i < 16 else None
        self.fix_T(acc)
        for i in range(8):
            a(f"  v_pk_mul_f32 {vr(acc+2*i,2)}, {vr(acc+2*i,2)}, v[30:31] op_sel_hi:[1,0]")
        for hd in range(2):
            b = acc + 8 * hd
            a(f"  v_pk_mul_f32 v[24:25], {vr(b,2)}, {vr(b,2)}")
            for i in range(1, 4): a(f"  v_pk_fma_f32 v[24:25], {vr(b+2*i,2)}, {vr(b+2*i,2)}, v[24:25]")
            a(f"  v_add_f32 v24, v24, v25")
            xhalf_add(a, 24, 25)
            a(f"  v_max_f32 v{vNmax}, v{vNmax}, v24")
        for i in range(8): a(f"  v_cvt_pk_bf16_f32 v{acc+i}, v{acc+2*i}, v{acc+2*i+1}")
        a(f"  buffer_store_dwordx4 {vr(acc,4)}, v{vL16}, s[{sWS}:{sWS+3}], s{sT[1]} offen")
        a(f"  buffer_store_dwordx4 {vr(acc+4,4)}, v{vL16}, s[{sWS}:{sWS+3}], s{sT[2]} offen")
        self.vm.issue("st"); self.vm.issue("st")

    def store_norm(self, kind):
        a = self.a
        wave_max_reduce(a, vNmax, 24)
        a(f"""
  s_lshl_b32 s{sT[1]}, s{sJ}, 6
  s_add_u32 s{sT[1]}, s{sT[1]}, s{sTb}
  s_lshl_b32 s{sT[1]}, s{sT[1]}, 2
  s_add_u32 s{sT[1]}, s{sT[1]}, {NRM_OFF + kind*2048}
  v_mov_b32 v24, 0
  buffer_store_dword v{vNmax}, v24, s[{sWS}:{sWS+3}], s{sT[1]} offen
""")
        self.vm.issue("st")

    def v_setup(self):
        a = self.a
        a(f"""
  v_and_b32 v24, 31, v0
  s_lshl_b32 s{sT[0]}, s{sWv}, 8
  s_add_u32 s{sT[0]}, s{sT[0]}, {L_RSM}
  v_lshl_add_u32 v25, v24, 2, s{sT[0]}
  ds_write_b32 v25, v{vRs}
  ds_write_b32 v25, v{vRs+1} offset:128
  v_lshrrev_b32 v26, 5, v0
  v_lshl_add_u32 v26, v26, 4, s{sT[0]}
  s_waitcnt lgkmcnt(0)
""")
        for g in range(4): a(f"  ds_read_b128 {vr(CS+4*g,4)}, v26 offset:{g*32}")
        for g in range(4): a(f"  ds_read_b128 {vr(BI+4*g,4)}, v26 offset:{128+g*32}")
        a(f"""
  v_lshrrev_b32 v25, 4, v24              ; t>>4
  v_lshlrev_b32 v23, 16, v25
  v_and_b32 v25, 15, v24
  v_lshl_add_u32 v23, v25, 4, v23
  v_lshrrev_b32 v25, 5, v0
  v_lshl_add_u32 v23, v25, 8, v23
  s_waitcnt lgkmcnt(0)
""")
    def E_v(self, acc, blk):
        a = self.a
        a(f"""
  s_lshl_b32 s{sT[1]}, s{sJ}, 2
  s_add_u32 s{sT[1]}, s{sT[1]}, {2*blk}
  s_lshl_b32 s{sT[1]}, s{sT[1]}, 16
  s_lshl_b32 s{sT[2]}, s{sTb}, 10
  s_add_u32 s{sT[1]}, s{sT[1]}, s{sT[2]}
  s_add_u32 s{sT[1]}, s{sT[1]}, {VF_OFF}
  v_sub_f32 v30, 0, v{vCs[blk]}
""")
        for i in range(8):
            a(f"  v_pk_mul_f32 {vr(acc+2*i,2)}, {vr(acc+2*i,2)}, {vr(CS+2*i,2)}")
        for i in range(8):
            a(f"  v_pk_fma_f32 {vr(acc+2*i,2)}, {vr(BI+2*i,2)}, v[30:31], {vr(acc+2*i,2)} op_sel_hi:[1,0,1]")
        for i in range(8):
            a(f"  v_max3_f32 v{vNmax}, |v{acc+2*i}|, |v{acc+2*i+1}|, v{vNmax}")
        for i in range(8): a(f"  v_cvt_pk_bf16_f32 v{acc+i}, v{acc+2*i}, v{acc+2*i+1}")
        a(f"  buffer_store_dwordx4 {vr(acc,4)}, v23, s[{sWS}:{sWS+3}], s{sT[1]} offen")
        a(f"  buffer_store_dwordx4 {vr(acc+4,4)}, v23, s[{sWS}:{sWS+3}], s{sT[1]} offen offset:512")
        self.vm.issue("st"); self.vm.issue("st")

    def E_act(self, acc, blk, sf):
        a = self.a
        self.load_cs(blk)
        a(f"""
  s_mul_i32 s{sT[1]}, s{sTb}, 144
  s_lshr_b32 s{sT[2]}, s{sf}, 4
  s_add_u32 s{sT[1]}, s{sT[1]}, s{sT[2]}
  s_lshl_b32 s{sT[1]}, s{sT[1]}, 10
  s_add_u32 s{sT[1]}, s{sT[1]}, {AOF_OFF}
  s_waitcnt lgkmcnt(0)
""")
        self.fix_T(acc)
        P = lambda i, b: vr(b + 2 * i, 2)
        for i in range(8): a(f"  v_pk_fma_f32 {P(i,acc)}, {P(i,acc)}, {vr(vRs,2)}, {P(i,BI)} op_sel_hi:[1,0,1]")
        for i in range(8): a(f"  v_pk_mul_f32 {P(i,CS)}, {P(i,acc)}, {vr(vLg,2)} op_sel_hi:[1,0]")
        for i in range(16): a(f"  v_exp_f32 v{CS+i}, v{CS+i}")
        for i in range(8): a(f"  v_pk_add_f32 {P(i,BI)}, {P(i,CS)}, {vr(vC2,2)} op_sel_hi:[1,0]")
        for i in range(8): a(f"  v_pk_fma_f32 {P(i,BI)}, {P(i,BI)}, {P(i,CS)}, {vr(vC2,2)} op_sel_hi:[1,1,0]")
        for i in range(16): a(f"  v_rcp_f32 v{BI+i}, v{BI+i}")
        for i in range(8): a(f"  v_pk_mul_f32 {P(i,BI)}, {P(i,BI)}, {P(i,acc)}")
        for i in range(8): a(f"  v_pk_fma_f32 {P(i,acc)}, {P(i,BI)}, {vr(vCm2,2)}, {P(i,acc)} op_sel_hi:[1,0,1]")
        for i in range(8): a(f"  v_cvt_pk_bf16_f32 v{acc+i}, v{acc+2*i}, v{acc+2*i+1}")
        a(f"  buffer_store_dwordx4 {vr(acc,4)}, v{vL16}, s[{sWS}:{sWS+3}], s{sT[1]} offen")
        a(f"  buffer_store_dwordx4 {vr(acc+4,4)}, v{vL16}, s[{sWS}:{sWS+3}], s{sT[1]} offen offset:1024")
        self.vm.issue("st"); self.vm.issue("st")

    def M2(self, addr):
        a = self.a; acc = ACC[0]
        for r in range(16): a(f"  v_mov_b32 v{acc+r}, 0")
        a(f"  v_mov_b32 v{vCs[0]}, 0")
        off = lambda ks: (ks >> 3) * 16384 + (ks & 7) * 2048
        for ks in range(3): self.tr(WB[ks & 3], addr, off(ks))
        for ks in range(32):
            rem = min(2, 31 - ks)
            a(f"  s_waitcnt lgkmcnt({2*rem})")
            for i in range(4): a(f"  v_dot2_f32_bf16 v{vCs[0]}, v{WB[ks&3]+i}, v{vOnes}, v{vCs[0]}")
            a(f"  v_mfma_f32_32x32x16_bf16 {vr(acc,16)}, {vr(WB[ks&3],4)}, {vr(XF+4*ks,4)}, {vr(acc,16)}")
            if ks + 3 < 32: self.tr(WB[(ks + 3) & 3], addr, off(ks + 3))
        a("  s_nop 2")
        xhalf_add(a, vCs[0], 124)
        a(f"""
  v_and_b32 v124, 31, v0
  s_lshl_b32 s{sT[0]}, s{sWv}, 8
  s_add_u32 s{sT[0]}, s{sT[0]}, {L_CSW}
  v_lshl_add_u32 v126, v124, 2, s{sT[0]}
  ds_write_b32 v126, v{vCs[0]}
  s_waitcnt lgkmcnt(0)
  s_nop 7
""")

    def fin(self):
        stamp(self.a, 7); stamp(self.a, 8, True); stamp_flush(self.a, 9, 0, sWv, sWS)
        self.a("  s_endpgm")
    def by_barrier(self):
        stamp(self.a, 5)
        self.wait_vm(("p", 3), ("p", 2), ("p", 1), ("p", 0))
        self.a("  s_barrier")
        stamp(self.a, 6)

    def f0(self, dst, base_sgpr, add_bytes):
        self.a(f"  s_add_u32 s{dst}, s{base_sgpr}, {add_bytes}\n  s_lshr_b32 s{dst}, s{dst}, 1")

    def emit(self):
        a = self.a; n = self.name
        self.prologue()
        vm0 = list(self.vm.q)
        a(f"""
  s_cmp_eq_u32 s{sTy}, 1
  s_cbranch_scc0 {n}_T
  s_cmp_eq_u32 s{sHalf}, 0
  s_cbranch_scc1 {n}_N
""")
        a.label(f"{n}_T")
        self.pass1("T"); self.stats()
        vm1 = list(self.vm.q)
        sF = sT[6]
        a(f"""
  s_cmp_eq_u32 s{sTy}, 1
  s_cbranch_scc1 {n}_YB
  s_cmp_eq_u32 s{sHalf}, 1
  s_cbranch_scc1 {n}_XB
""")
        self.E_qk(ACC[0], 0, 0); self.E_qk(ACC[1], 1, 0); self.store_norm(0)
        self.f0(sF, sF0, 0); self.bias_issue(sF)
        self.by_barrier()
        self.M2(vWp[0]); self.bias_finish(); self.E_act(ACC[0], 0, sF)
        a(f"""
  s_and_b32 s{sT[0]}, s{sJ}, 1
  s_lshl_b32 s{sT[1]}, s{sT[0]}, 6
  s_add_u32 s{sF}, s{sF0+1}, s{sT[1]}
  s_lshr_b32 s{sF}, s{sF}, 1
  v_subrev_u32 v17, {WR}, v{vWp[0]}
  v_xor_b32 v17, s{sT[1]}, v17
""")
        self.bias_issue(sF); self.M2(17); self.bias_finish(); self.E_act(ACC[0], 0, sF)
        self.fin()
        a.label(f"{n}_XB"); self.vm.q = list(vm1)
        self.E_qk(ACC[0], 0, 1); self.E_qk(ACC[1], 1, 1); self.store_norm(1)
        self.f0(sF, sF0, 64); self.bias_issue(sF)
        self.by_barrier()
        self.M2(vWp[1]); self.bias_finish(); self.E_act(ACC[0], 0, sF)
        self.fin()
        a.label(f"{n}_YB"); self.vm.q = list(vm1)
        self.f0(sF, sF0, 128); self.bias_issue(sF); self.bias_finish(); self.E_act(ACC[0], 0, sF)
        self.f0(sF, sF0, 128 + 64); self.bias_issue(sF)
        self.by_barrier()
        self.bias_finish(); self.E_act(ACC[1], 1, sF)
        self.f0(sF, sF0, 256 + 64); self.bias_issue(sF)
        self.M2(vWp[1]); self.bias_finish(); self.E_act(ACC[0], 0, sF)
        self.fin()
        a.label(f"{n}_N"); self.vm.q = list(vm0)
        self.pass1("N"); self.stats()
        self.v_setup(); self.E_v(ACC[0], 0); self.E_v(ACC[1], 1); self.store_norm(2)
        self.f0(sF, sF0, 256); self.bias_issue(sF)
        self.by_barrier()
        self.M2(vWp[0]); self.bias_finish(); self.E_act(ACC[0], 0, sF)
        self.fin()
        a.label(f"{n}_end")
        a("  s_endpgm")

def emit_k1(a, name):
    K1(a, name).emit()
```

```python
from asmlib import *
from common import *
RED_STRIDE = 64 * 272
K3_LDS = 8 * RED_STRIDE
ACC = 64
FB = 128
DEPTH = 4
sWS, sX, sO = 8, 12, 16
sW, sTbp, sNbp = 20, 21, 22
def srd(a, s, ptr, size):
    a(f"  s_mov_b32 s{s}, s{ptr}\n  s_and_b32 s{s+1}, s{ptr+1}, 0xffff\n  s_mov_b32 s{s+2}, {size}\n  s_mov_b32 s{s+3}, 0x00020000")

def reduce_store(a, acc, vL, sW, sTbp, sNbp, sX, sO, vX):
    a(f"""
  v_and_b32 v2, 31, v{vL}
  v_lshrrev_b32 v3, 5, v{vL}
  v_mul_u32_u24 v2, 272, v2
  v_lshl_add_u32 v2, v3, 4, v2
  s_mul_i32 s30, s{sW}, {RED_STRIDE}
  v_add_u32 v2, s30, v2
""")
    for b in range(2):
        for c in range(2):
            for g in range(4):
                a(f"  ds_write_b128 v2, {vr(acc+16*(2*b+c)+4*g,4)} offset:{c*32*272 + (32*b+8*g)*4}")
    a(f"""
  s_lshl_b32 s30, s{sW}, 6
  v_add_u32 v4, s30, v{vL}               ; tid
  v_lshrrev_b32 v5, 3, v4
  v_and_b32 v6, 7, v4
  v_mul_u32_u24 v5, 272, v5
  v_lshl_add_u32 v5, v6, 5, v5
  s_waitcnt lgkmcnt(0)
  s_barrier
""")
    a(f"  v_add_u32 v6, {4*RED_STRIDE}, v5")
    for w in range(8):
        base = 5 if w < 4 else 6
        off = (w & 3) * RED_STRIDE
        a(f"  ds_read_b128 {vr(acc+8*w,4)}, v{base} offset:{off}")
        a(f"  ds_read_b128 {vr(acc+8*w+4,4)}, v{base} offset:{off+16}")
    a("  s_waitcnt lgkmcnt(8)")
    for w in range(1, 4):
        for i in range(4): a(f"  v_pk_add_f32 {vr(acc+2*i,2)}, {vr(acc+2*i,2)}, {vr(acc+8*w+2*i,2)}")
    a("  s_waitcnt lgkmcnt(0)")
    for w in range(4, 8):
        for i in range(4): a(f"  v_pk_add_f32 {vr(acc+2*i,2)}, {vr(acc+2*i,2)}, {vr(acc+8*w+2*i,2)}")
    for i in range(4):
        a(f"  v_lshlrev_b32 v8, 16, v{vX+i}\n  v_and_b32 v9, 0xffff0000, v{vX+i}")
        a(f"  v_pk_add_f32 {vr(acc+2*i,2)}, {vr(acc+2*i,2)}, v[8:9]")
    for i in range(4): a(f"  v_cvt_pk_bf16_f32 v{acc+i}, v{acc+2*i}, v{acc+2*i+1}")

def emit_k3(a, name):
    a(f"""
  s_cmp_ge_u32 s2, 256
  s_cbranch_scc1 {name}_end
  s_load_dwordx2 s[4:5], s[0:1], 72
  s_load_dwordx2 s[6:7], s[0:1], 0
  s_load_dwordx2 s[24:25], s[0:1], 56
  v_lshrrev_b32 v1, 6, v0
  v_and_b32 v10, 63, v0
  v_readfirstlane_b32 s{sW}, v1
  v_lshlrev_b32 v11, 4, v10
  s_and_b32 s26, s2, 7
  s_lshr_b32 s27, s2, 3
  s_lshl_b32 s{sTbp}, s26, 2
  s_and_b32 s28, s27, 3
  s_add_u32 s{sTbp}, s{sTbp}, s28
  s_lshr_b32 s{sNbp}, s27, 2
  ; soffsets
  s_mul_i32 s28, s{sW}, 18
  s_mul_i32 s32, s{sNbp}, 288
  s_add_u32 s32, s32, s28
  s_lshl_b32 s32, s32, 10
  s_add_u32 s32, s32, {WF_OFF}           ; W0
  s_add_u32 s33, s32, {144*1024}         ; W1
  s_mul_i32 s34, s{sTbp}, 288
  s_add_u32 s34, s34, s28
  s_lshl_b32 s34, s34, 10
  s_add_u32 s34, s34, {AOF_OFF}          ; A0
  s_add_u32 s35, s34, {144*1024}         ; A1
  v_lshrrev_b32 v2, 3, v0
  v_and_b32 v3, 7, v0
  v_lshlrev_b32 v2, 10, v2
  v_lshl_add_u32 v12, v3, 4, v2
  s_lshl_b32 s29, s{sTbp}, 16
  s_lshl_b32 s30, s{sNbp}, 7
  s_add_u32 s29, s29, s30
  s_waitcnt lgkmcnt(0)
""")
    srd(a, sWS, 4, WS_SIZE); srd(a, sX, 6, 2097152); srd(a, sO, 24, 2097152)
    vm = Cnt(63)
    def loads(ks):
        st = FB + 16 * (ks % DEPTH)
        q, r = divmod(ks, 4)
        if r == 0 and q > 0:
            for s in (32, 33, 34, 35): a(f"  s_add_u32 s{s}, s{s}, 4096")
        for i, s in enumerate((32, 33, 34, 35)):
            a(f"  buffer_load_dwordx4 {vr(st+4*i,4)}, v11, s[{sWS}:{sWS+3}], s{s} offen offset:{r*1024}")
            vm.issue(ks)
    for ks in range(DEPTH): loads(ks)
    a(f"  buffer_load_dwordx4 v[14:17], v12, s[{sX}:{sX+3}], s29 offen"); vm.issue("x")
    for r in range(64): a(f"  v_mov_b32 v{ACC+r}, 0")
    for ks in range(18):
        st = FB + 16 * (ks % DEPTH)
        a(f"  s_waitcnt vmcnt({vm.need(ks)})")
        for b in range(2):
            for c in range(2):
                d = ACC + 16 * (2 * b + c)
                a(f"  v_mfma_f32_32x32x16_bf16 {vr(d,16)}, {vr(st+4*b,4)}, {vr(st+8+4*c,4)}, {vr(d,16)}")
        if ks + DEPTH < 18: loads(ks + DEPTH)
    a("  s_nop 7\n  s_nop 7")
    reduce_store(a, ACC, 10, sW, sTbp, sNbp, sX, sO, 14)
    a(f"  buffer_store_dwordx4 {vr(ACC,4)}, v12, s[{sO}:{sO+3}], s29 offen")
    a.label(f"{name}_end")
    a("  s_endpgm")
```

```python
from asmlib import *
from common import *
HEADER = """; Kernarg layout (80 bytes, ptrs only, base s[0:1]):
"""
def kernel_block(label, body, vgpr=256, sgpr=96, accum=None):
    accum = accum or ((vgpr + 3) // 4 * 4)
    return f""".globl {label}
.p2align 8
.type {label},@function
{label}:
{body}"""
def descriptor(label, vgpr=256, sgpr=96):
    return f""".amdhsa_kernel {label}
  .amdhsa_next_free_vgpr {vgpr}
  .amdhsa_next_free_sgpr {sgpr}
  .amdhsa_accum_offset {min(256,(vgpr+3)//4*4)}
  .amdhsa_group_segment_fixed_size 0
  .amdhsa_kernarg_size 80
  .amdhsa_user_sgpr_count 2
  .amdhsa_user_sgpr_kernarg_segment_ptr 1
  .amdhsa_system_sgpr_workgroup_id_x 1
  .amdhsa_float_denorm_mode_32 3
.end_amdhsa_kernel
"""
def make_file(kernels):
    s = HEADER
    for (label, body, grid, block, lds, vgpr, sgpr) in kernels:
        s += f"; @launch kernel={label} grid=({grid},1,1) block=({block},1,1) lds={lds}\n"
    s += '.amdgcn_target "amdgcn-amd-amdhsa--gfx950"\n.text\n'
    done = set()
    for (label, body, grid, block, lds, vgpr, sgpr) in kernels:
        if label in done: continue
        done.add(label)
        s += kernel_block(label, body)
    s += '.section .rodata,"a"\n'
    done = set()
    for (label, body, grid, block, lds, vgpr, sgpr) in kernels:
        if label in done: continue
        done.add(label)
        s += ".p2align 6\n" + descriptor(label, vgpr, sgpr)
    return s
```

```python
import sys
from asmlib import *
from mkfile import *
import k1, attn, k3
attn.MODE = "duo"
def body(fn, nm):
    a = Asm(); fn(a, nm); return a.text()
def instrument(txt, idx, nm):
    pre = f"""  s_load_dwordx2 s[96:97], s[0:1], 64
  s_memrealtime s[98:99]
  s_waitcnt lgkmcnt(0)
  s_sub_u32 s96, s96, {512*idx}
  s_subb_u32 s97, s97, 0
  v_mov_b32 v250, s98
  v_not_b32 v250, v250
  v_mov_b32 v251, {idx*8}
  global_atomic_umax v251, v250, s[96:97]
"""
    post = f"""  s_memrealtime s[98:99]
  s_waitcnt lgkmcnt(0)
  v_mov_b32 v250, s98
  v_mov_b32 v251, {idx*8+4}
  global_atomic_umax v251, v250, s[96:97]
  s_endpgm
"""
    lines = txt.split("\n")
    out = []; done = False
    for i, l in enumerate(lines):
        if l.strip() == "s_endpgm" and not (i > 0 and lines[i-1].strip().endswith("_end:")):
            out.append(post); continue
        out.append(l)
        if not done and l.strip().startswith("s_cbranch_scc1") and l.strip().endswith("_end"):
            out.append(pre); done = True
    return "\n".join(out)
t1 = instrument(body(k1.emit_k1, "k1"), 0, "k1")
a = Asm(); attn.emit_attn(a, "att"); t2 = a.text().replace("att_end:\n  s_endpgm", "  s_endpgm\natt_end:\n  s_endpgm"); t2 = instrument(t2, 1, "att")
a = Asm(); k3.emit_k3(a, "k3"); t3 = a.text().replace("k3_end:\n  s_endpgm", "  s_endpgm\nk3_end:\n  s_endpgm"); t3 = instrument(t3, 2, "k3")
K1 = ("proj_kernel", t1, 256, 512, k1.K1_LDS, 256, 102)
K2 = ("attn_kernel", t2, 256, 512, attn.ATT_LDS, 256, 102)
K3 = ("outp_kernel", t3, 256, 512, k3.K3_LDS, 256, 102)
open("var/S.s", "w").write(make_file([K1, K2, K3]))
```

```python
import sys
TGT = int(sys.argv[1])
from asmlib import *
from mkfile import *
import k1, attn, k3
attn.MODE = "duo"
def body(fn, nm):
    a = Asm(); fn(a, nm); return a.text()
def instrument(txt, idx, nm):
    pre = f"""  s_load_dwordx2 s[96:97], s[0:1], 64
  s_memrealtime s[98:99]
  s_waitcnt lgkmcnt(0)
  s_add_u32 s96, s96, {512*(TGT-idx) & 0xffffffff}
  s_addc_u32 s97, s97, {0 if TGT >= idx else -1}
  v_mov_b32 v250, s98
  v_not_b32 v250, v250
  v_mov_b32 v251, {idx*8}
  v_cmp_eq_u32 vcc, 0, v0
  s_and_saveexec_b64 s[100:101], vcc
  global_atomic_umax v251, v250, s[96:97]
  s_mov_b64 exec, s[100:101]
"""
    post = f"""  s_memrealtime s[98:99]
  s_waitcnt lgkmcnt(0)
  v_mov_b32 v250, s98
  v_mov_b32 v251, {idx*8+4}
  s_mov_b64 exec, 1
  global_atomic_umax v251, v250, s[96:97]
  s_endpgm
"""
    lines = txt.split("\n")
    out = []; done = False
    for i, l in enumerate(lines):
        if l.strip() == "s_endpgm" and not (i > 0 and lines[i-1].strip().endswith("_end:")):
            out.append(post); continue
        out.append(l)
        if not done and l.strip().startswith("s_cbranch_scc1") and l.strip().endswith("_end"):
            out.append(pre); done = True
    return "\n".join(out)
t1 = instrument(body(k1.emit_k1, "k1"), 0, "k1")
a = Asm(); attn.emit_attn(a, "att"); t2 = a.text().replace("att_end:\n  s_endpgm", "  s_endpgm\natt_end:\n  s_endpgm"); t2 = instrument(t2, 1, "att")
a = Asm(); k3.emit_k3(a, "k3"); t3 = a.text().replace("k3_end:\n  s_endpgm", "  s_endpgm\nk3_end:\n  s_endpgm"); t3 = instrument(t3, 2, "k3")
K1 = ("proj_kernel", t1, 256, 512, k1.K1_LDS, 256, 102)
K2 = ("attn_kernel", t2, 256, 512, attn.ATT_LDS, 256, 102)
K3 = ("outp_kernel", t3, 256, 512, k3.K3_LDS, 256, 102)
open(f"var/S{TGT}.s", "w").write(make_file([K1, K2, K3]))
```

```python
from asmlib import *
from common import *
import hprof

L_K, L_V, L_ONES, L_CMB = 0, 65536, 131072, 139264
CMB_STRIDE = 2560
ATT_LDS = L_CMB + 8 * CMB_STRIDE

QA, QB = 8, 12
SA, SB = 16, 32
OA, OB = 48, 64
KB = [80, 84]
VB = [88, 96]
vKa, vVa, vVinc, vL16 = 104, 105, 106, 107
MA, MB_ = 112, 128
sWS = 8
sHead, sQb, sW, sQg, sKh = 12, 13, 14, 15, 16
sT0, sT1, sT2, sT3 = 17, 18, 19, 20
sIt = 21

def srd_ws(a, kernarg="s[0:1]"):
    a(f"""
  s_load_dwordx2 s[4:5], {kernarg}, 72
""")

def stage(a, X, Y, kt_par, is_a, cX, cY, u, slots):
    SX = X; SY = Y
    OX = OA if is_a else OB
    OY = OB if is_a else OA
    QY = QB if is_a else QA
    cur = kt_par; nxt = kt_par ^ 1
    Vprev2 = (VB[nxt] + 4) if is_a else (VB[cur] + 4)
    Kq = KB[cur] if is_a else KB[nxt]
    V1 = VB[cur]
    E = lambda i: a(f"  v_exp_f32 v{SX+i}, v{SX+i}")
    C = lambda i: a(f"  v_cvt_pk_bf16_f32 v{SX+i}, v{SX+2*i}, v{SX+2*i+1}")
    def S(k):
        for l in slots[k]: a("  " + l)
    E(0)
    a(f"  v_cvt_pk_bf16_f32 v{SY+7}, v{SY+14}, v{SY+15}")
    E(1); E(2)
    a(f"  v_mfma_f32_32x32x16_bf16 {vr(OY,16)}, {vr(Vprev2,4)}, {vr(SY+4,4)}, {vr(OY,16)}"); S(0)
    C(0); E(3); E(4); C(1); E(5); E(6)
    a(f"  v_mfma_f32_32x32x16_bf16 {vr(SY,16)}, {vr(Kq,4)}, {vr(QY,4)}, {cY}"); S(1)
    C(2); E(7); E(8); C(3); E(9); E(10)
    a(f"  v_mfma_f32_32x32x16_bf16 {vr(OX,16)}, {vr(V1,4)}, {vr(SX,4)}, {vr(OX,16)}"); S(2)
    C(4); E(11); E(12); C(5); E(13); E(14); C(6); E(15)

MODE = "duo"
def main_loop(a, name, cA, cB, bar=True):
    U = 4
    NIT = 8 if MODE == "duo" else 16
    a(f"  s_mov_b32 s{sIt}, 0")
    a("  .p2align 6")
    a.label(f"{name}_loop")
    if bar:
        a(f"""
  s_cmp_eq_u32 s{sIt}, {1 if MODE == 'duo' else 3}
  s_cbranch_scc1 {name}_bar
""")
    a.label(f"{name}_nobar")
    for u in range(U):
        nxt = (u & 1) ^ 1
        sa = [[f"ds_read_b128 {vr(KB[nxt],4)}, v{vKa} offset:{(u+1)*1024}"],
              [f"ds_read_b128 {vr(VB[nxt],4)}, v{vVa} offset:{(u+1)*1024}"],
              [f"ds_read_b128 {vr(VB[nxt]+4,4)}, v{vVa} offset:{(u+1)*1024+512}"]]
        sb = [["s_waitcnt lgkmcnt(0)"], [], []]
        if u == U - 1:
            sb[1] = [f"s_add_u32 s{sIt}, s{sIt}, 1"]
            sb[2] = [f"s_cmp_lt_u32 s{sIt}, {NIT}"]
        stage(a, SA, SB, u & 1, True, cA, cB, u, sa)
        stage(a, SB, SA, u & 1, False, cB, cA, u, sb)
    a(f"""
  v_add_u32 v{vKa}, {U*1024}, v{vKa}
  v_add_u32 v{vVa}, v{vVinc}, v{vVa}
  s_cbranch_scc1 {name}_loop
""")
    if bar:
        a(f"  s_branch {name}_drain")
        a.label(f"{name}_bar")
        a(f"  s_waitcnt vmcnt(0)\n  s_barrier\n  s_branch {name}_nobar")
        a.label(f"{name}_drain")
    a(f"  v_cvt_pk_bf16_f32 v{SB+7}, v{SB+14}, v{SB+15}\n  s_nop 1")
    a(f"  v_mfma_f32_32x32x16_bf16 {vr(OB,16)}, {vr(VB[1]+4,4)}, {vr(SB+4,4)}, {vr(OB,16)}")

def wave_max_reduce(a, v, t):
    for ror in (8, 4, 2, 1):
        a(f"  s_nop 1\n  v_max_f32_dpp v{v}, v{v}, v{v} row_ror:{ror} row_mask:0xf bank_mask:0xf")
    a(f"  v_mov_b32 v{t}, v{v}\n  s_nop 1\n  v_permlane16_swap_b32 v{v}, v{t}\n  s_nop 1\n  v_max_f32 v{v}, v{v}, v{t}")
    a(f"  v_mov_b32 v{t}, v{v}\n  s_nop 1\n  v_permlane32_swap_b32 v{v}, v{t}\n  s_nop 1\n  v_max_f32 v{v}, v{v}, v{t}")

STAMP = False
STPOL = ''
_stamp_n = [0]
def stamp(a, idx):
    if STAMP:
        a(f"  s_memtime s[{40+2*idx}:{41+2*idx}]")
def stamp_flush(a, n):
    if not STAMP: return
    a("  s_waitcnt lgkmcnt(0)")
    a(f"  s_lshl_b32 s60, s2, 3\n  s_add_u32 s60, s60, s{sW}\n  s_lshl_b32 s60, s60, 6\n  s_add_u32 s60, s60, {SYNC_OFF}")
    for i in range(n):
        a(f"  v_mov_b32 v2, s{40+2*i}\n  v_mov_b32 v3, s{41+2*i}\n  v_mov_b32 v4, {8*i}\n  buffer_store_dwordx2 v[2:3], v4, s[{sWS}:{sWS+3}], s60 offen")

def emit_attn(a, name, standalone=True):
    a(f"""
  s_cmp_ge_u32 s2, 256
  s_cbranch_scc1 {name}_end
""")
    stamp(a, 0)
    hp = hprof.HP(a, 1, sW); hp.mark_at(0, "att start")
    a(f"""
  s_load_dwordx2 s[4:5], s[0:1], 72
  v_lshrrev_b32 v1, 6, v0
  v_and_b32 v0, 63, v0
  v_readfirstlane_b32 s{sW}, v1
  s_and_b32 s{sHead}, s2, 31
  s_lshr_b32 s{sQb}, s2, 5
  v_lshlrev_b32 v{vL16}, 4, v0
  s_and_b32 s{sQg}, s{sW}, 3
  s_lshr_b32 s{sKh}, s{sW}, 2
  s_waitcnt lgkmcnt(0)
  s_mov_b32 s{sWS}, s4
  s_and_b32 s{sWS+1}, s5, 0xffff
  s_mov_b32 s{sWS+2}, {WS_SIZE}
  s_mov_b32 s{sWS+3}, 0x00020000
""")
    if MODE == "duo":
        a(f"""
  s_bfe_u32 s{sT0}, s{sW}, 0x10001       ; half
  s_lshl_b32 s{sT0}, s{sT0}, 5
  s_and_b32 s{sT1}, s{sW}, 1             ; sub
  s_lshl_b32 s{sT2}, s{sT1}, 2
  s_add_u32 s{sT2}, s{sT2}, s{sT0}
""")
    else:
        a(f"""
  s_mov_b32 s{sT0}, 8
  s_and_b32 s{sT1}, s{sW}, 3             ; sub
  s_lshl_b32 s{sT2}, s{sT1}, 2
""")
    a(f"""
  s_lshl_b32 s{sT2}, s{sT2}, 10
  s_lshl_b32 s{sT3}, s{sKh}, 16
  s_add_u32 s22, s{sT2}, s{sT3}
  s_mov_b32 m0, s22
  s_lshl_b32 s23, s{sKh}, 21             ; kind*2MB
  s_lshl_b32 s24, s{sHead}, 16
  s_add_u32 s23, s23, s24
  s_add_u32 s23, s23, {KF_OFF}
  s_add_u32 s25, s23, s{sT2}
""")
    for e in range(4):
        a(f"  buffer_load_dwordx4 v{vL16}, s[{sWS}:{sWS+3}], s25 offen offset:{e*1024} lds")
    a(f"""
  s_lshl_b32 s26, s{sQb}, 3
  s_lshl_b32 s27, s{sQg}, 1
  s_add_u32 s26, s26, s27                ; tb0
  s_lshl_b32 s27, s26, 10
  s_add_u32 s27, s27, s24
  s_add_u32 s27, s27, {QF_OFF}
  buffer_load_dwordx4 {vr(QA,4)}, v{vL16}, s[{sWS}:{sWS+3}], s27 offen
  buffer_load_dwordx4 {vr(QB,4)}, v{vL16}, s[{sWS}:{sWS+3}], s27 offen offset:1024
  v_lshlrev_b32 v1, 2, v0
  s_lshr_b32 s28, s{sHead}, 2
  s_lshl_b32 s28, s28, 8
  s_add_u32 s28, s28, {NRM_OFF}
  buffer_load_dword v2, v1, s[{sWS}:{sWS+3}], s28 offen
  buffer_load_dword v3, v1, s[{sWS}:{sWS+3}], s28 offen offset:2048
  s_add_u32 s28, s28, 4096
  buffer_load_dword v4, v1, s[{sWS}:{sWS+3}], s28 offen
""")
    a(f"""
  s_mul_i32 s29, s{sT1}, 12
  s_add_u32 s29, s29, s{sT0}
  s_add_u32 s29, s29, 8
  s_lshl_b32 s29, s29, 10
""")
    for g in range(3):
        a(f"""
  s_add_u32 s22, s29, s{sT3}
  s_mov_b32 m0, s22
  s_add_u32 s25, s23, s29
""")
        for e in range(4):
            a(f"  buffer_load_dwordx4 v{vL16}, s[{sWS}:{sWS+3}], s25 offen offset:{e*1024} lds")
        if g < 2: a(f"  s_add_u32 s29, s29, 4096")
    a(f"""
  v_mov_b32 v108, 0x3f803f80
  v_mov_b32 v109, 0x3f803f80
  v_mov_b32 v110, 0x3f803f80
  v_mov_b32 v111, 0x3f803f80
  s_lshl_b32 s30, s{sW}, 10
  s_add_u32 s30, s30, {L_ONES}
  v_add_u32 v5, s30, v{vL16}
  ds_write_b128 v5, v[108:111]
  s_lshl_b32 s30, s{sKh}, 15
  {'' if MODE == 'duo' else 's_mov_b32 s30, 0'}
  v_add_u32 v{vKa}, s30, v{vL16}
  v_and_b32 v5, 31, v0                   ; t
  v_lshrrev_b32 v6, 5, v0                ; h
  v_lshlrev_b32 v7, 4, v5                ; t*16
  v_lshl_add_u32 v7, v6, 8, v7           ; + h*256
  s_add_u32 s30, s30, {L_V}
  v_add_u32 v7, s30, v7
  v_subrev_u32 v6, 20, v5                ; t-20
  v_cmp_gt_u32 vcc, 8, v6                ; t in [20,28)
  v_mov_b32 v{vVa}, {L_ONES}
  v_mov_b32 v6, {L_ONES+64}
  v_cndmask_b32 v{vVa}, v{vVa}, v6, vcc
  v_cmp_gt_u32 vcc, 16, v5
  v_mov_b32 v{vVinc}, 0
  v_mov_b32 v6, 4096
  v_cndmask_b32 v{vVa}, v{vVa}, v7, vcc
  v_cndmask_b32 v{vVinc}, v{vVinc}, v6, vcc
""")
    for r in list(range(OA, OA + 32)) + list(range(SB + 4, SB + 8)) + [SB + 14, SB + 15] + list(range(VB[1] + 4, VB[1] + 8)):
        a(f"  v_mov_b32 v{r}, 0")
    a("  s_waitcnt vmcnt(12) lgkmcnt(0)\n  s_barrier")
    stamp(a, 1); hp.mark_at(1, "att bar1")
    if MODE == "solo":
        a(f"""
  s_cmp_lt_u32 s{sW}, 4
  s_cbranch_scc1 {name}_go
  s_waitcnt vmcnt(0)
  s_barrier
  s_endpgm
""")
        a.label(f"{name}_go")
    a(f"""
  ds_read_b128 {vr(KB[0],4)}, v{vKa}
  ds_read_b128 {vr(VB[0],4)}, v{vVa}
  ds_read_b128 {vr(VB[0]+4,4)}, v{vVa} offset:512
""")
    wave_max_reduce(a, 2, 5); wave_max_reduce(a, 3, 5); wave_max_reduce(a, 4, 5)
    a(f"""
  v_mul_f32 v2, v2, v3
  v_mov_b32 v5, 0x45700000             ; 3840 = 4096/1.067
  v_mov_b32 v6, 0x53800000             ; 2^40
  v_cmp_le_f32 vcc, v2, v5
  v_cmp_le_f32 s[30:31], v4, v6
  s_nop 4
  s_and_b64 vcc, vcc, s[30:31]
  s_cmp_eq_u64 vcc, exec
  s_waitcnt lgkmcnt(0)
  s_cbranch_scc0 {name}_slow
""")
    a(f"  v_mfma_f32_32x32x16_bf16 {vr(SA,16)}, {vr(KB[0],4)}, {vr(QA,4)}, 0")
    a("  s_nop 7\n  s_nop 3")
    stamp(a, 2)
    main_loop(a, name + "_f", "0", "0")
    stamp(a, 3); hp.mark_at(2, "att loop end")
    a(f"  s_branch {name}_epi")
    a.label(f"{name}_slow")
    a(f"""
  s_waitcnt vmcnt(0)
  s_barrier
  v_mov_b32 v2, 0xff800000
  v_mov_b32 v3, 0xff800000
  v_mov_b32 v4, v{vKa}
  s_mov_b32 s{sIt}, 0
""")
    a.label(f"{name}_mx")
    a(f"""
  ds_read_b128 {vr(KB[1],4)}, v4
  v_add_u32 v4, 1024, v4
  s_waitcnt lgkmcnt(0)
  v_mfma_f32_32x32x16_bf16 {vr(SA,16)}, {vr(KB[1],4)}, {vr(QA,4)}, 0
  v_mfma_f32_32x32x16_bf16 {vr(MA,16)}, {vr(KB[1],4)}, {vr(QB,4)}, 0
  s_nop 15
""")
    for i in range(8): a(f"  v_max3_f32 v2, v2, v{SA+2*i}, v{SA+2*i+1}")
    for i in range(8): a(f"  v_max3_f32 v3, v3, v{MA+2*i}, v{MA+2*i+1}")
    a(f"""
  s_add_u32 s{sIt}, s{sIt}, 1
  s_cmp_lt_u32 s{sIt}, {32 if MODE == 'duo' else 64}
  s_cbranch_scc1 {name}_mx
""")
    for v in (2, 3):
        a(f"  v_mov_b32 v5, v{v}\n  s_nop 1\n  v_permlane32_swap_b32 v{v}, v5\n  s_nop 1\n  v_max_f32 v{v}, v{v}, v5")
    if MODE == 'duo':
        a(f"""
  s_mul_i32 s30, s{sW}, {CMB_STRIDE}
  s_add_u32 s30, s30, {L_CMB}
  v_lshlrev_b32 v5, 3, v0
  v_add_u32 v6, s30, v5
  ds_write_b64 v6, v[2:3]
  s_xor_b32 s31, s{sW}, 4
  s_mul_i32 s31, s31, {CMB_STRIDE}
  s_add_u32 s31, s31, {L_CMB}
  v_add_u32 v6, s31, v5
  s_waitcnt lgkmcnt(0)
  s_barrier
  ds_read_b64 v[6:7], v6
  s_waitcnt lgkmcnt(0)
  v_max_f32 v2, v2, v6
  v_max_f32 v3, v3, v7
""")
    for i in range(16):
        a(f"  v_sub_f32 v{MA+i}, 0, v2\n  v_sub_f32 v{MB_+i}, 0, v3")
    if MODE == "duo": a("  s_barrier")
    a(f"  s_nop 1\n  v_mfma_f32_32x32x16_bf16 {vr(SA,16)}, {vr(KB[0],4)}, {vr(QA,4)}, {vr(MA,16)}")
    a("  s_nop 7\n  s_nop 3")
    main_loop(a, name + "_s", vr(MA, 16), vr(MB_, 16), bar=False)
    a.label(f"{name}_epi")
    if MODE == "duo":
        a(f"""
  s_mul_i32 s30, s{sW}, {CMB_STRIDE}
  s_add_u32 s30, s30, {L_CMB}
  v_add_u32 v5, s30, v{vL16}
  s_xor_b32 s31, s{sW}, 4
  s_mul_i32 s31, s31, {CMB_STRIDE}
  s_add_u32 s31, s31, {L_CMB}
  v_add_u32 v6, s31, v{vL16}
  v_lshlrev_b32 v7, 2, v0
  v_add_u32 v2, s30, v7
  v_add_u32 v3, s31, v7
  s_cmp_eq_u32 s{sKh}, 0
  s_cbranch_scc1 {name}_epi0
""")
        def comb(send, keep, lab_next):
            a("  s_nop 7\n  s_nop 3")
            a(f"""
  ds_write_b128 v5, {vr(send,4)}
  ds_write_b128 v5, {vr(send+4,4)} offset:1024
  ds_write_b32 v2, v{send+8} offset:2048
  s_waitcnt lgkmcnt(0)
  s_barrier
  ds_read_b128 v[80:83], v6
  ds_read_b128 v[84:87], v6 offset:1024
  ds_read_b32 v88, v3 offset:2048
  s_waitcnt lgkmcnt(0)
""")
            for i in range(9): a(f"  v_add_f32 v{80+i}, v{80+i}, v{keep+i}")
        comb(OA, OB, None)
        a(f"  s_branch {name}_epi1")
        a.label(f"{name}_epi0")
        comb(OB, OA, None)
        a.label(f"{name}_epi1")
        a("  v_rcp_f32 v88, v88\n  s_nop 0")
        for i in range(8): a(f"  v_mul_f32 v{80+i}, v{80+i}, v88")
        for i in range(4): a(f"  v_cvt_pk_bf16_f32 v{80+i}, v{80+2*i}, v{80+2*i+1}")
        a(f"""
  s_add_u32 s26, s26, s{sKh}             ; tb
  s_mul_i32 s27, s26, 144
  s_add_u32 s27, s27, s{sHead}
  s_add_u32 s27, s27, 112
  s_lshl_b32 s27, s27, 10
  s_add_u32 s27, s27, {AOF_OFF}
  buffer_store_dwordx4 v[80:83], v{vL16}, s[{sWS}:{sWS+3}], s27 offen{STPOL}
""")

    else:
        a("  s_nop 7\n  s_nop 3")
        a(f"""
  s_mul_i32 s27, s26, 144
  s_add_u32 s27, s27, s{sHead}
  s_add_u32 s27, s27, 112
  s_lshl_b32 s27, s27, 10
  s_add_u32 s27, s27, {AOF_OFF}
  s_add_u32 s28, s27, {144*1024}
""")
        for (O, so) in ((OA, 27), (OB, 28)):
            a(f"  v_rcp_f32 v{O+8}, v{O+8}\n  s_nop 0")
            for i in range(8): a(f"  v_mul_f32 v{O+i}, v{O+i}, v{O+8}")
            for i in range(4): a(f"  v_cvt_pk_bf16_f32 v{O+i}, v{O+2*i}, v{O+2*i+1}")
            a(f"  buffer_store_dwordx4 {vr(O,4)}, v{vL16}, s[{sWS}:{sWS+3}], s{so} offen")
    stamp(a, 4)
    stamp_flush(a, 5)
    hp.mark_at(3, "att end"); hp.flush("att", 4)
    a("  s_endpgm")
    a.label(f"{name}_end")
    a("  s_endpgm")
```

```python
from common import *
PROF_OFF = SYNC_OFF + 0x80000
ENABLED = False
class HP:
    def __init__(self, a, kidx, sW, first_sgpr=84):
        self.a, self.k, self.sW, self.s0 = a, kidx, sW, first_sgpr
        self.n = 0
    def mark(self, name=None):
        if not ENABLED: return
        i = self.n; self.n += 1
        assert self.s0 + i < 96
        self.a(f"  s_memrealtime s[98:99]\n  s_waitcnt lgkmcnt(0)\n  s_mov_b32 s{self.s0+i}, s98")
        NAMES[(self.k, i)] = name
    def mark_at(self, i, name=None):
        if not ENABLED: return
        self.n = max(self.n, i + 1)
        self.a(f"  s_memrealtime s[98:99]\n  s_waitcnt lgkmcnt(0)\n  s_mov_b32 s{self.s0+i}, s98")
        NAMES[(self.k, i)] = name
    def flush(self, uid, nslots, vt=(1, 2)):
        if not ENABLED: return
        a = self.a
        a(f"""
  s_cmp_eq_u32 s2, 0
  s_cbranch_scc0 hp_skip_{uid}
  s_and_b32 s98, s{self.sW}, 3
  s_cmp_eq_u32 s98, 0
  s_cbranch_scc0 hp_skip_{uid}
  s_load_dwordx2 s[96:97], s[0:1], 72
  s_lshr_b32 s98, s{self.sW}, 2
  s_add_u32 s98, s98, {self.k*2}
  s_lshl_b32 s98, s98, 6
  s_add_u32 s98, s98, {PROF_OFF}
  s_waitcnt lgkmcnt(0)
  s_add_u32 s96, s96, s98
  s_addc_u32 s97, s97, 0
""")
        for i in range(nslots):
            a(f"  v_mov_b32 v{vt[0]}, s{self.s0+i}\n  v_mov_b32 v{vt[1]}, {4*i}\n  global_store_dword v{vt[1]}, v{vt[0]}, s[96:97] sc0 sc1")
        a("  s_waitcnt vmcnt(0)")
        a.label(f"hp_skip_{uid}")
    def spin(self, uid, which, vt=(1, 2)):
        if not ENABLED: return
        a = self.a
        a(f"""
  s_cmp_eq_u32 s2, 0
  s_cbranch_scc0 hp_fin_{uid}
  s_cmp_eq_u32 s{self.sW}, 0
  s_cbranch_scc0 hp_fin_{uid}
  s_load_dwordx2 s[96:97], s[0:1], 72
  s_waitcnt lgkmcnt(0)
  s_add_u32 s96, s96, {PROF_OFF}
  s_addc_u32 s97, s97, 0
  v_mov_b32 v{vt[1]}, {4*which}
  global_load_dword v{vt[0]}, v{vt[1]}, s[96:97] sc0 sc1
  s_waitcnt vmcnt(0)
  v_readfirstlane_b32 s100, v{vt[0]}
  s_nop 4
  s_add_u32 s100, s100, 10000
  s_mov_b32 s101, 0
hp_spin_{uid}:
  s_memrealtime s[96:97]
  s_waitcnt lgkmcnt(0)
  s_sub_u32 s99, s96, s100
  s_add_u32 s101, s101, 1
  s_cmp_gt_u32 s101, 2000000
  s_cbranch_scc1 hp_fin_{uid}
  s_cmp_lt_i32 s99, 0
  s_cbranch_scc1 hp_spin_{uid}
""")
        a.label(f"hp_fin_{uid}")
NAMES = {}
def index(k, half, i): return (k * 2 + half) * 16 + i
```

```python
from asmlib import *
from common import *
import struct
import hprof

XR, WR = 0, 65536
L_STAT = 131072
L_CSP  = L_STAT + 2048
L_CSF  = L_CSP + 7168
L_RSM  = L_CSF + 1024
L_BIAS = L_RSM + 2048
K1_LDS = L_BIAS + 1024
vX0, vX1, vWd0, vWd1, vPd0, vPd1 = 2, 3, 4, 5, 6, 7
vXa = [8, 9, 10, 11]
vWa = [12, 13]
vWp = [14, 15]
vL16 = 16
vNmu, vRs, vMr, vNmax = 18, 19, 20, 22
vCa = [30, 31]
CS, BI = 32, 48
ACC = [64, 80]
WB = [96, 100, 104, 108]
vCsD = [112, 116]
vSel = 120
vSum, vSumH, vSq, vSqH = 124, 125, 126, 127
XF = 128
sX, sW, sW1, sWS, sB1, sWT = 8, 12, 16, 20, 24, 28
pX, pWqkv, pWo, pBx, pW1, pB1, pW2, pOut, pDbg, pWs = 36, 38, 40, 42, 44, 46, 48, 50, 52, 54
sWv, sTbl, sHalf, sRt, sJ, sTy, sTb = 56, 57, 58, 59, 60, 61, 62
sXs, sXm, sWs_, sWm, sPitch64 = 63, 64, 65, 66, 67
sPs, sPm, sSs = 68, 69, 70
sT = [72, 73, 74, 75, 76, 77, 78, 79]
sTst = 80
sF0 = 81
sF = 83
sBo, sTl = 32, 33
vTa = 17
LOG2E = 0x3fb8aa3b
def f2u(x): return struct.unpack("<I", struct.pack("<f", x))[0]

def srd(a, s, ptr, size):
    a(f"  s_mov_b32 s{s}, s{ptr}\n  s_and_b32 s{s+1}, s{ptr+1}, 0xffff\n  s_mov_b32 s{s+2}, {size}\n  s_mov_b32 s{s+3}, 0x00020000")
def xhalf_add(a, v, t):
    a(f"  v_mov_b32 v{t}, v{v}\n  s_nop 1\n  v_permlane32_swap_b32 v{v}, v{t}\n  s_nop 1\n  v_add_f32 v{v}, v{v}, v{t}")
def wave_max_reduce(a, v, t):
    for ror in (8, 4, 2, 1):
        a(f"  s_nop 1\n  v_max_f32_dpp v{v}, v{v}, v{v} row_ror:{ror} row_mask:0xf bank_mask:0xf")
    a(f"  v_mov_b32 v{t}, v{v}\n  s_nop 1\n  v_permlane16_swap_b32 v{v}, v{t}\n  s_nop 1\n  v_max_f32 v{v}, v{v}, v{t}")
    a(f"  v_mov_b32 v{t}, v{v}\n  s_nop 1\n  v_permlane32_swap_b32 v{v}, v{t}\n  s_nop 1\n  v_max_f32 v{v}, v{v}, v{t}")

DEBUG = False
STPOL = ''
PREFETCH = False
EXP = set()
STAMP = False
SB0 = 84
def stamp(a, i, real=False):
    if STAMP: a(f"  {'s_memrealtime' if real else 's_memtime'} s[{SB0+2*i}:{SB0+2*i+1}]\n  s_waitcnt lgkmcnt(0)")
def stamp_flush(a, n, kidx, sW, srdws):
    if not STAMP: return
    a("  s_waitcnt lgkmcnt(0)")
    a(f"  s_lshl_b32 s72, s2, 3\n  s_add_u32 s72, s72, s{sW}\n  s_lshl_b32 s72, s72, 7\n  s_add_u32 s72, s72, {SYNC_OFF + kidx*262144}")
    for i in range(n):
        a(f"  v_mov_b32 v2, s{SB0+2*i}\n  v_mov_b32 v3, s{SB0+2*i+1}\n  v_mov_b32 v4, {8*i}\n  buffer_store_dwordx2 v[2:3], v4, s[{srdws}:{srdws+3}], s72 offen")

class K1:
    def __init__(self, a, name):
        self.a = a; self.name = name; self.vm = Cnt(63)

    def dma_chunk_steps(self, c):
        slot = c & 3
        st = [[f"s_add_u32 m0, s{sXm}, {XR + slot*16384}", f"s_add_u32 s{sT[0]}, s{sXs}, {c*128}", f"buffer_load_dwordx4 v{vX0}, s[{sX}:{sX+3}], s{sT[0]} offen lds"],
              [f"buffer_load_dwordx4 v{vX1}, s[{sX}:{sX+3}], s{sT[0]} offen offset:1024 lds"],
              [f"s_add_u32 m0, s{sWm}, {WR + slot*16384}", "s_nop 0", f"buffer_load_dwordx4 v{vWd0}, s[{sW}:{sW+3}], s{sWs_} offen lds"],
              [f"buffer_load_dwordx4 v{vWd1}, s[{sW}:{sW+3}], s{sWs_} offen offset:1024 lds", f"s_add_u32 s{sWs_}, s{sWs_}, s{sPitch64}"]]
        return [(x, ("c", c)) for x in st]
    def dma_piece_steps(self, q):
        st = [[f"s_add_u32 m0, s{sPm}, {WR + q*16384}", f"s_add_u32 s{sT[0]}, s{sPs}, {q*128*3584}", f"buffer_load_dwordx4 v{vPd0}, s[{sW1}:{sW1+3}], s{sT[0]} offen lds"],
              [f"buffer_load_dwordx4 v{vPd1}, s[{sW1}:{sW1+3}], s{sT[0]} offen offset:1024 lds"],
              [f"s_add_u32 m0, s{sPm}, {XR + q*16384}", f"s_add_u32 s{sT[0]}, s{sSs}, {q*128*3584}", f"buffer_load_dwordx4 v{vPd0}, s[{sW1}:{sW1+3}], s{sT[0]} offen lds"],
              [f"buffer_load_dwordx4 v{vPd1}, s[{sW1}:{sW1+3}], s{sT[0]} offen offset:1024 lds"]]
        return [(x, ("p", q)) for x in st]
    def do_step(self, step):
        for l in step[0]: self.a("  " + l)
        self.vm.issue(step[1])
    def dma_chunk(self, c):
        for st in self.dma_chunk_steps(c): self.do_step(st)
    def dma_piece(self, q, withS=True):
        for st in self.dma_piece_steps(q): self.do_step(st)
    def wait_vm(self, *tags, extra=""):
        n = self.vm.need(*tags)
        if n is not None: self.a(f"  s_waitcnt vmcnt({n}){extra}")

    def prologue(self):
        a = self.a; n = self.name
        a(f"""
  s_cmp_ge_u32 s2, 256
  s_cbranch_scc1 {n}_end
""")
        stamp(a, 0, True); stamp(a, 1)
        self.hp = hprof.HP(a, 0, sWv); self.hp.mark_at(0, "k1 start")
        a(f"""
  s_load_dwordx16 s[36:51], s[0:1], 0
  s_load_dwordx4 s[52:55], s[0:1], 64
  v_lshrrev_b32 v1, 6, v0
  v_and_b32 v0, 63, v0
  v_readfirstlane_b32 s{sWv}, v1
  v_lshlrev_b32 v{vL16}, 4, v0
  s_and_b32 s{sT[0]}, s2, 7              ; xcd
  s_lshr_b32 s{sT[1]}, s2, 3             ; s
  s_and_b32 s{sRt}, s{sT[0]}, 1
  s_lshl_b32 s{sRt}, s{sRt}, 3
  s_and_b32 s{sT[2]}, s{sT[1]}, 7
  s_add_u32 s{sRt}, s{sRt}, s{sT[2]}     ; rt
  s_lshr_b32 s{sT[2]}, s{sT[0]}, 1
  s_lshl_b32 s{sT[2]}, s{sT[2]}, 2
  s_lshr_b32 s{sT[3]}, s{sT[1]}, 3
  s_add_u32 s{sT[2]}, s{sT[2]}, s{sT[3]} ; g
  s_and_b32 s{sTy}, s{sT[2]}, 1
  s_lshr_b32 s{sJ}, s{sT[2]}, 1
  s_and_b32 s{sTbl}, s{sWv}, 3
  s_lshr_b32 s{sHalf}, s{sWv}, 2
  s_lshl_b32 s{sTb}, s{sRt}, 2
  s_add_u32 s{sTb}, s{sTb}, s{sTbl}
  v_lshrrev_b32 v24, 3, v0               ; i>>3
  v_and_b32 v25, 7, v0                   ; i&7
  v_lshrrev_b32 v26, 4, v0               ; i>>4
  v_xor_b32 v27, v25, v26                ; x piece (e=0)
  v_lshlrev_b32 v27, 4, v27
  v_lshl_add_u32 v{vX0}, v24, 10, v27
  v_xor_b32 v{vX1}, 64, v{vX0}
  v_add_u32 v{vX1}, {8192-1024}, v{vX1}
  v_and_b32 v26, 1, v26
  v_lshlrev_b32 v26, 2, v26
  v_xor_b32 v27, v25, v26                ; W piece
  v_lshlrev_b32 v27, 4, v27              ; *16
  s_lshr_b32 s{sT[0]}, s{sJ}, 1
  s_mul_i32 s{sT[0]}, s{sT[0]}, 896      ; 896*m
  s_and_b32 s{sT[1]}, s{sJ}, 1
  s_lshl_b32 s{sT[2]}, s{sT[1]}, 9
  s_add_u32 s{sT[2]}, s{sT[2]}, s{sT[0]} ; lineoff
  s_add_u32 s{sT[3]}, s{sT[0]}, 384
  s_mov_b32 s{sF0}, s{sT[2]}
  s_mov_b32 s{sF0+1}, s{sT[3]}
  s_lshl_b32 s{sT[4]}, s{sJ}, 7          ; 128j
  s_lshl_b32 s{sT[5]}, s{sHalf}, 10
  s_add_u32 s{sT[5]}, s{sT[5]}, s{sT[4]}
  s_add_u32 s{sT[6]}, s{sT[4]}, 2048     ; Y half0
  s_add_u32 s{sT[7]}, s{sT[2]}, 128      ; Y half1 (w1)
  s_cmp_eq_u32 s{sHalf}, 0
  s_cselect_b32 s{sT[6]}, s{sT[6]}, s{sT[7]}
  s_cmp_eq_u32 s{sTy}, 0
  s_cselect_b32 s{sT[5]}, s{sT[5]}, s{sT[6]}
  s_and_b32 s{sT[6]}, s{sTy}, s{sHalf}
  s_cmp_eq_u32 s{sT[6]}, 1
  s_movk_i32 s{sT[7]}, 3072
  s_cselect_b32 s{sT[7]}, 3584, s{sT[7]} ; pitch
  s_lshl_b32 s{sPitch64}, s{sT[7]}, 6
  s_lshl_b32 s{sWs_}, s{sTbl}, 4
  s_mul_i32 s{sWs_}, s{sWs_}, s{sT[7]}
  s_add_u32 s{sWs_}, s{sWs_}, s{sT[5]}
  v_mul_lo_u32 v28, v24, s{sT[7]}
  v_add_u32 v{vWd0}, v28, v27
  s_lshl_b32 s{sT[7]}, s{sT[7]}, 3
  s_sub_u32 s{sT[7]}, s{sT[7]}, 1024
  v_add_u32 v{vWd1}, s{sT[7]}, v{vWd0}
  s_lshl_b32 s{sXm}, s{sWv}, 11          ; 16w*128
  s_lshl_b32 s{sWm}, s{sTbl}, 11
  s_lshl_b32 s{sT[7]}, s{sHalf}, 13
  s_add_u32 s{sWm}, s{sWm}, s{sT[7]}
  s_mov_b32 s{sPm}, s{sXm}
  s_lshl_b32 s{sXs}, s{sRt}, 17
  s_lshl_b32 s{sT[7]}, s{sWv}, 14
  s_add_u32 s{sXs}, s{sXs}, s{sT[7]}
  s_waitcnt lgkmcnt(0)
""")
        srd(a, sX, pX, 2097152)
        a(f"""
  s_cmp_eq_u32 s{sT[6]}, 1
  s_cselect_b32 s{sW}, s{pW1}, s{pWqkv}
  s_cselect_b32 s{sW+1}, s{pW1+1}, s{pWqkv+1}
  s_mov_b32 s{sW+2}, 1572864
  s_cselect_b32 s{sW+2}, 1835008, s{sW+2}
  s_and_b32 s{sW+1}, s{sW+1}, 0xffff
  s_mov_b32 s{sW+3}, 0x00020000
""")
        self.dma_chunk(0)
        a("  s_barrier")
        if PREFETCH: self.l2_prefetch()
        self.dma_chunk(1)
        a(f"""
  s_movk_i32 s{sT[0]}, 3584
  v_mul_lo_u32 v28, v24, s{sT[0]}
  v_add_u32 v{vPd0}, v28, v27
  v_add_u32 v{vPd1}, {8*3584-1024}, v{vPd0}
  s_mul_i32 s{sT[7]}, s{sWv}, {16*3584}
  s_add_u32 s{sT[5]}, s{sF0}, 256
  s_cmp_eq_u32 s{sTy}, 0
  s_cselect_b32 s{sPs}, s{sF0}, s{sT[5]}
  s_cselect_b32 s{sSs}, s{sF0+1}, 0x10000000
  s_add_u32 s{sPs}, s{sPs}, s{sT[7]}
  s_add_u32 s{sSs}, s{sSs}, s{sT[7]}
  v_and_b32 v24, 31, v0                  ; t
  v_lshrrev_b32 v25, 5, v0               ; h
  v_lshrrev_b32 v26, 1, v24
  v_and_b32 v26, 7, v26                  ; sw=(t>>1)&7
  v_xor_b32 v26, v26, v25                ; h^sw
  s_lshl_b32 s{sT[0]}, s{sTbl}, 12       ; 32*tbl*128
  v_lshlrev_b32 v27, 7, v24              ; t*128
  v_add_u32 v27, s{sT[0]}, v27
""")
        for s in range(4):
            a(f"  v_xor_b32 v28, {2*s}, v26\n  v_lshl_add_u32 v{vXa[s]}, v28, 4, v27")
        a(f"""
  v_lshrrev_b32 v26, 4, v0               ; g4
  v_and_b32 v27, 1, v26                  ; nh
  v_lshrrev_b32 v26, 1, v26              ; h
  v_and_b32 v28, 15, v0
  v_lshrrev_b32 v29, 2, v28              ; r
  v_and_b32 v28, 3, v28                  ; cc
  v_lshl_add_u32 v30, v26, 3, v29        ; 8h+r
  v_lshlrev_b32 v30, 7, v30              ; *128
  v_lshl_add_u32 v30, v27, 5, v30        ; + nh*32
  v_lshl_add_u32 v30, v28, 3, v30        ; + cc*8
  v_lshrrev_b32 v29, 1, v29
  v_and_b32 v29, 1, v29
  v_lshl_add_u32 v30, v29, 6, v30        ; + ((r>>1)&1)*64   (hb=0)
  v_add_u32 v{vWp[0]}, {WR}, v30
  v_xor_b32 v{vWp[1]}, 64, v{vWp[0]}
  s_lshl_b32 s{sT[0]}, s{sHalf}, 13
  v_add_u32 v{vWa[0]}, s{sT[0]}, v{vWp[0]}
  v_add_u32 v{vWa[1]}, s{sT[0]}, v{vWp[1]}
  s_lshl_b32 s{sT[0]}, s{sTbl}, 11
  v_add_u32 v{vCa[0]}, s{sT[0]}, v{vWa[0]}
  v_add_u32 v{vCa[1]}, s{sT[0]}, v{vWa[1]}
""")
        a(f"""
  v_mov_b32 v{vNmax}, 0
  v_and_b32 v24, 15, v0
  v_bfe_u32 v25, v0, 4, 1
  v_cmp_eq_u32 vcc, v24, v25
  v_mov_b32 v26, 0x3f803f80
  v_mov_b32 v27, 0
  v_cndmask_b32 v{vSel}, v27, v26, vcc
  v_cndmask_b32 v{vSel+1}, v27, v26, vcc
  v_cndmask_b32 v{vSel+2}, v27, v26, vcc
  v_cndmask_b32 v{vSel+3}, v27, v26, vcc
""")
        for r in list(range(ACC[0], ACC[0] + 32)) + list(range(vCsD[0], vCsD[0] + 8)) + [vSum, vSumH, vSq, vSqH]:
            a(f"  v_mov_b32 v{r}, 0")
        srd(a, sW1, pW1, 1835008); srd(a, sWS, pWs, WS_SIZE); srd(a, sB1, pB1, 3584)
        a(f"""
  s_add_u32 s{sT[0]}, s{sF0}, 128        ; pair a
  s_add_u32 s{sT[1]}, s{sF0}, 256
  s_cmp_eq_u32 s{sTy}, 0
  s_cselect_b32 s{sT[1]}, s{sF0}, s{sT[1]}   ; P pair
  s_cmp_lt_u32 s{sWv}, 4
  s_cselect_b32 s{sT[0]}, s{sT[0]}, s{sT[1]}
  s_and_b32 s{sT[1]}, s{sWv}, 1
  s_lshl_b32 s{sT[1]}, s{sT[1]}, 6
  s_add_u32 s{sT[0]}, s{sT[0]}, s{sT[1]}
  s_and_b32 s{sT[1]}, s{sJ}, 1
  s_lshl_b32 s{sT[1]}, s{sT[1]}, 6
  s_add_u32 s{sT[1]}, s{sT[1]}, s{sF0+1}
  s_cmp_ge_u32 s{sWv}, 6
  s_cselect_b32 s{sT[0]}, s{sT[1]}, s{sT[0]}
  s_mov_b32 s{sBo}, s{sT[0]}
""")
        a(f"""
  s_lshl_b32 s{sT[0]}, s{sWv}, 8
  s_add_u32 s{sT[0]}, s{sT[0]}, s2       ; u
  s_lshr_b32 s{sT[1]}, s{sT[0]}, 3       ; ks
  s_and_b32 s{sT[2]}, s{sT[0]}, 7        ; nbp
  s_cmp_lt_u32 s{sT[1]}, 112
  s_cselect_b32 s{sWT}, s{pW2}, s{pWo}
  s_cselect_b32 s{sWT+1}, s{pW2+1}, s{pWo+1}
  s_mov_b32 s{sWT+2}, 524288
  s_cselect_b32 s{sWT+2}, 1835008, s{sWT+2}
  s_cselect_b32 s{sT[3]}, 0, 112
  s_and_b32 s{sWT+1}, s{sWT+1}, 0xffff
  s_mov_b32 s{sWT+3}, 0x00020000
  s_sub_u32 s{sT[3]}, s{sT[1]}, s{sT[3]}
  s_lshl_b32 s{sT[3]}, s{sT[3]}, 14      ; row0*1024
  s_lshl_b32 s{sT[4]}, s{sT[2]}, 7
  s_add_u32 s{sT[3]}, s{sT[3]}, s{sT[4]}
  s_mul_i32 s{sTst}, s{sT[2]}, 288
  s_add_u32 s{sTst}, s{sTst}, s{sT[1]}
  s_lshl_b32 s{sTst}, s{sTst}, 10
  s_add_u32 s{sTst}, s{sTst}, {WF_OFF}
  s_cmp_lt_u32 s{sT[0]}, 1152
  s_cselect_b32 s{sTst}, s{sTst}, 0x20000000
  s_cselect_b32 s{sT[3]}, s{sT[3]}, 0x20000000
  v_and_b32 v24, 31, v0                  ; t
  v_lshrrev_b32 v25, 5, v0               ; h
  v_lshlrev_b32 v26, 1, v24
  v_lshl_add_u32 v26, v25, 12, v26       ; 4h*1024 + 2t
""")
        a(f"  s_mov_b32 s{sTl}, s{sT[3]}\n  v_mov_b32 v{vTa}, v26\n  v_and_b32 v21, 31, v0\n  v_lshlrev_b32 v21, 1, v21")
        self.dma_chunk(2)

    def l2_prefetch(self):
        a = self.a; n = self.name
        a(f"""
  s_lshr_b32 s{sT[0]}, s2, 3             ; share i
  s_and_b32 s{sT[1]}, s2, 7              ; xcd
  s_cmp_lt_u32 s{sWv}, 4
  s_cbranch_scc0 {n}_pfw
  s_and_b32 s{sT[2]}, s{sT[1]}, 1
  s_lshl_b32 s{sT[2]}, s{sT[2]}, 20
  s_lshl_b32 s{sT[3]}, s{sT[0]}, 15
  s_add_u32 s{sT[2]}, s{sT[2]}, s{sT[3]}
  s_lshl_b32 s{sT[3]}, s{sWv}, 13
  s_add_u32 s{sT[2]}, s{sT[2]}, s{sT[3]}
  v_lshlrev_b32 v29, 7, v0
  buffer_load_dword v1, v29, s[{sX}:{sX+3}], s{sT[2]} offen
  s_branch {n}_pfd
{n}_pfw:
  s_lshr_b32 s{sT[1]}, s{sT[1]}, 1       ; m
  s_lshl_b32 s{sT[2]}, s{sT[0]}, 4       ; row0 = 16 i
  s_and_b32 s{sT[3]}, s{sWv}, 1
  s_lshl_b32 s{sT[3]}, s{sT[3]}, 3
  s_add_u32 s{sT[2]}, s{sT[2]}, s{sT[3]} ; + 8*(w&1)
  v_lshrrev_b32 v28, 3, v0
  v_and_b32 v29, 7, v0
  s_cmp_lt_u32 s{sWv}, 6
  s_cbranch_scc0 {n}_pf1
  v_min_u32 v29, 5, v29
  v_lshrrev_b32 v1, 1, v29
  v_lshlrev_b32 v1, 10, v1
  v_and_b32 v29, 1, v29
  v_lshl_add_u32 v29, v29, 7, v1
  s_movk_i32 s{sT[3]}, 3072
  v_mul_lo_u32 v28, v28, s{sT[3]}
  v_add_u32 v29, v29, v28
  s_mul_i32 s{sT[2]}, s{sT[2]}, 3072
  s_lshl_b32 s{sT[1]}, s{sT[1]}, 8
  s_add_u32 s{sT[2]}, s{sT[2]}, s{sT[1]}
  s_mov_b32 s92, s{pWqkv}
  s_and_b32 s93, s{pWqkv+1}, 0xffff
  s_mov_b32 s94, 1572864
  s_mov_b32 s95, 0x00020000
  buffer_load_dword v1, v29, s[92:95], s{sT[2]} offen
  s_branch {n}_pfd
{n}_pf1:
  v_min_u32 v29, 6, v29
  v_lshlrev_b32 v29, 7, v29
  s_movk_i32 s{sT[3]}, 3584
  v_mul_lo_u32 v28, v28, s{sT[3]}
  v_add_u32 v29, v29, v28
  s_mul_i32 s{sT[2]}, s{sT[2]}, 3584
  s_mul_i32 s{sT[1]}, s{sT[1]}, 896
  s_add_u32 s{sT[2]}, s{sT[2]}, s{sT[1]}
  s_mov_b32 s92, s{pW1}
  s_and_b32 s93, s{pW1+1}, 0xffff
  s_mov_b32 s94, 1835008
  s_mov_b32 s95, 0x00020000
  buffer_load_dword v1, v29, s[92:95], s{sT[2]} offen
{n}_pfd:
""")
        self.vm.issue("pf")

    def t_steps(self):
        st = [([f"buffer_load_ushort v21, v21, s[{sB1}:{sB1+3}], s{sBo} offen"], "B")]
        for j in range(8):
            row = (j & 3) + 8 * (j >> 2)
            st.append(([f"s_add_u32 s{sT[4]}, s{sTl}, {row*1024}", f"buffer_load_ushort v{BI+j}, v{vTa}, s[{sWT}:{sWT+3}], s{sT[4]} offen"], "T"))
            st.append(([f"buffer_load_ushort v{BI+8+j}, v{vTa}, s[{sWT}:{sWT+3}], s{sT[4]} offen offset:64"], "T"))
        return st

    def tr(self, dst, addr, off):
        self.a(f"  ds_read_b64_tr_b16 {vr(dst,2)}, v{addr} offset:{off}")
        self.a(f"  ds_read_b64_tr_b16 {vr(dst+2,2)}, v{addr} offset:{off+512}")

    def wf_finish(self):
        a = self.a
        a(f"""
  v_lshlrev_b32 v21, 16, v21
  v_and_b32 v24, 31, v0
  s_lshl_b32 s{sT[1]}, s{sWv}, 7
  s_add_u32 s{sT[1]}, s{sT[1]}, {L_BIAS}
  v_lshl_add_u32 v24, v24, 2, s{sT[1]}
  ds_write_b32 v24, v21
""")
        for b in range(2):
            for i in range(4):
                a(f"  v_lshl_or_b32 v{BI+8*b+i}, v{BI+8*b+2*i+1}, 16, v{BI+8*b+2*i}")
        a(f"  buffer_store_dwordx4 {vr(BI,4)}, v{vL16}, s[{sWS}:{sWS+3}], s{sTst} offen{STPOL}")
        a(f"  s_add_u32 s{sTst}, s{sTst}, {144*1024}")
        a(f"  buffer_store_dwordx4 {vr(BI+8,4)}, v{vL16}, s[{sWS}:{sWS+3}], s{sTst} offen{STPOL}")
        self.vm.issue("st"); self.vm.issue("st")

    def cs16(self, acc, frag, first=False):
        self.a(f"  v_mfma_f32_16x16x32_bf16 {vr(acc,4)}, {vr(frag,4)}, {vr(vSel,4)}, {0 if first else vr(acc,4)}")

    def cs_addr(self, dst, t, part_sgpr, slot_sgpr=None):
        a = self.a
        a(f"""
  v_and_b32 v{t}, 15, v0
  v_lshrrev_b32 v{dst}, 4, v0
  v_lshlrev_b32 v{dst}, 7, v{dst}
  v_lshl_add_u32 v{dst}, v{t}, 9, v{dst}
  s_lshl_b32 s{sT[1]}, s{part_sgpr}, 2
  s_add_u32 s{sT[1]}, s{sT[1]}, {L_CSP}
  v_add_u32 v{dst}, s{sT[1]}, v{dst}
""")
        if slot_sgpr is not None: a(f"  v_add_u32 v{dst}, s{slot_sgpr}, v{dst}")
        a(f"  v_cmp_gt_u32 vcc, 2, v{t}\n  s_and_saveexec_b64 s[{sT[2]}:{sT[3]}], vcc")
    def cs_add(self, addr, acc, slot):
        for r in range(4): self.a(f"  ds_write_b32 v{addr}, v{acc+r} offset:{slot*1024 + 32*r}")
    def exec_restore(self):
        self.a(f"  s_mov_b64 exec, s[{sT[2]}:{sT[3]}]")
    def cs_final(self, slots, nparts, keep=None):
        a = self.a
        a(f"  v_and_b32 v24, 31, v0\n  v_lshlrev_b32 v25, 5, v24\n  v_add_u32 v25, {L_CSP}, v25\n  v_lshlrev_b32 v24, 2, v24\n  v_add_u32 v24, {L_CSF}, v24")
        for i, sl in enumerate(slots):
            a(f"  ds_read_b128 {vr(CS+8*i,4)}, v25 offset:{sl*1024}")
            if nparts == 8: a(f"  ds_read_b128 {vr(CS+8*i+4,4)}, v25 offset:{sl*1024+16}")
        a("  s_waitcnt lgkmcnt(0)")
        for i, sl in enumerate(slots):
            b = CS + 8 * i
            if nparts == 8:
                for r in range(4): a(f"  v_add_f32 v{b+r}, v{b+r}, v{b+4+r}")
            a(f"  v_add_f32 v{b}, v{b}, v{b+1}\n  v_add_f32 v{b+2}, v{b+2}, v{b+3}\n  v_add_f32 v{b}, v{b}, v{b+2}")
            if keep: a(f"  v_mov_b32 v{keep[i]}, v{b}")
            else: a(f"  ds_write_b32 v24, v{b} offset:{sl*128}")
        if not keep: a("  s_waitcnt lgkmcnt(0)")

    def pass1(self, orient, half):
        a = self.a
        lg = Cnt(15)
        def rd_x(g):
            c, s = g >> 2, g & 3
            a(f"  ds_read_b128 {vr(XF+4*g,4)}, v{vXa[s]} offset:{XR+(c&3)*16384}"); lg.issue(("g", g))
        def rd_w(g, b):
            c, s = g >> 2, g & 3
            self.tr(WB[(g & 1) * 2 + b], vWa[b], (c & 3) * 16384 + s * 2048); lg.issue(("g", g)); lg.issue(("g", g))
        self.wait_vm(("c", 0))
        a("  s_barrier")
        stamp(a, 2); self.hp.mark_at(1, "k1 c0 landed")
        for g in (0, 1):
            rd_x(g); rd_w(g, 0); rd_w(g, 1)
        steps = []
        tst = self.t_steps()
        for g in range(32):
            c, s = g >> 2, g & 3
            buf = (g & 1) * 2; xf = XF + 4 * g
            a(f"  s_waitcnt lgkmcnt({lg.need(('g', g))})")
            nxt = g + 2 < 32
            if s == 2:
                if c < 7: self.wait_vm(("c", c + 1))
                a("  s_barrier")
                if c <= 4: steps = self.dma_chunk_steps(c + 3)
                else: steps = self.dma_piece_steps(c - 5)
            for b in range(2):
                A, B = (WB[buf+b], xf) if orient == "T" else (xf, WB[buf+b])
                a(f"  v_mfma_f32_32x32x16_bf16 {vr(ACC[b],16)}, {vr(A,4)}, {vr(B,4)}, {vr(ACC[b],16)}")
                if nxt:
                    if b == 0: rd_x(g + 2)
                    rd_w(g + 2, b)
            if s == 0 and "nocs" not in EXP:
                self.tr(CS, vCa[0], (c & 3) * 16384); self.tr(CS + 4, vCa[1], (c & 3) * 16384)
                for _ in range(4): lg.issue(("cs", c))
            if steps:
                st = steps.pop(0)
                if "nodma" in EXP: self.vm.issue(st[1])
                else: self.do_step(st)
            if 3 <= g and tst: self.do_step(tst.pop(0))
            if g == 25:
                assert not tst
                self.wait_vm("T", "B"); self.wf_finish(); lg.issue("bw")
            if s == 3 and "nocs" not in EXP:
                n_ = lg.need(("cs", c))
                if n_ is not None: a(f"  s_waitcnt lgkmcnt({n_})")
                self.cs16(vCsD[0], CS); self.cs16(vCsD[1], CS + 4)
            if "nostats" not in EXP:
                for r in (xf + 2 * half, xf + 2 * half + 1):
                    t = 24 + 2 * (r & 1)
                    a(f"  v_lshlrev_b32 v{t}, 16, v{r}\n  v_and_b32 v{t+1}, 0xffff0000, v{r}")
                    a(f"  v_add_f32 v{vSum}, v{vSum}, v{t}\n  v_add_f32 v{vSumH}, v{vSumH}, v{t+1}")
                    a(f"  v_fma_f32 v{vSq}, v{t}, v{t}, v{vSq}\n  v_fma_f32 v{vSqH}, v{t+1}, v{t+1}, v{vSqH}")
        while steps: self.do_step(steps.pop(0))

    def stats(self):
        a = self.a
        stamp(a, 3); self.hp.mark_at(2, "k1 pass1 end")
        a(f"  v_add_f32 v{vSum}, v{vSum}, v{vSumH}\n  v_add_f32 v{vSq}, v{vSq}, v{vSqH}")
        a(f"  v_mov_b32 v{vSumH}, v{vSq}")
        xhalf_add(a, vSum, 24); xhalf_add(a, vSumH, 24)
        a(f"""
  v_and_b32 v24, 31, v0
  s_lshl_b32 s{sT[0]}, s{sWv}, 8
  s_add_u32 s{sT[1]}, s{sT[0]}, {L_STAT}
  v_lshl_add_u32 v25, v24, 3, s{sT[1]}
  ds_write_b64 v25, v[{vSum}:{vSum+1}]
  s_xor_b32 s{sT[1]}, s{sT[0]}, 1024
  s_add_u32 s{sT[1]}, s{sT[1]}, {L_STAT}
  v_lshl_add_u32 v23, v24, 3, s{sT[1]}
  s_lshl_b32 s{sT[4]}, s{sHalf}, 11
""")
        self.cs_addr(26, 27, sTbl, sT[4])
        self.cs_add(26, vCsD[0], 0); self.cs_add(26, vCsD[1], 1)
        self.exec_restore()
        a("  s_waitcnt lgkmcnt(0)\n  s_barrier")
        self.dma_piece(3, True)
        a(f"""
  ds_read_b64 v[24:25], v23
  s_waitcnt lgkmcnt(0)
  v_add_f32 v{vSum}, v{vSum}, v24
  v_add_f32 v{vSq}, v{vSumH}, v25
  v_mul_f32 v{vSum}, 0x3b000000, v{vSum}        ; mean
  v_mul_f32 v{vSq}, 0x3b000000, v{vSq}
  v_fma_f32 v{vSq}, -v{vSum}, v{vSum}, v{vSq}   ; var
  v_max_f32 v{vSq}, 0, v{vSq}
  v_add_f32 v{vSq}, 0x3727c5ac, v{vSq}          ; + 1e-5
  v_rsq_f32 v{vRs}, v{vSq}
  v_sub_f32 v{vNmu}, 0, v{vSum}
  v_mul_f32 v{vMr}, v{vSum}, v{vRs}
""")

    def cs_phase(self, blocks):
        a = self.a
        a(f"""
  s_lshr_b32 s{sT[0]}, s{sWv}, 1
  s_lshl_b32 s{sT[0]}, s{sT[0]}, 14
  s_and_b32 s{sT[1]}, s{sWv}, 1
  s_lshl_b32 s{sT[1]}, s{sT[1]}, 13
  s_add_u32 s{sT[0]}, s{sT[0]}, s{sT[1]}
""")
        accs = [vCsD[0], vCsD[1], WB[0]]
        for i, (addr, slot) in enumerate(blocks):
            fr = CS if (i & 1) == 0 else BI
            a(f"  v_add_u32 v24, s{sT[0]}, v{addr}")
            for k in range(4): self.tr(fr + 4 * k, 24, k * 2048)
            a("  s_waitcnt lgkmcnt(0)")
            for k in range(4): self.cs16(accs[i], fr + 4 * k, k == 0)
        self.cs_addr(26, 27, sWv)
        a("  s_nop 7")
        for i, (addr, slot) in enumerate(blocks): self.cs_add(26, accs[i], slot)
        self.exec_restore()
        a("  s_waitcnt lgkmcnt(0)\n  s_barrier")
        stamp(a, 5); self.hp.mark_at(4, "k1 postCs")
        self.m2n = 0

    def load_cs(self, slot=None, slot_sgpr=None):
        a = self.a
        a(f"  v_lshrrev_b32 v24, 5, v0\n  v_lshlrev_b32 v24, 4, v24\n  v_add_u32 v24, {L_CSF + (slot or 0)*128}, v24")
        if slot_sgpr is not None: a(f"  v_add_u32 v24, s{slot_sgpr}, v24")
        for g in range(4): a(f"  ds_read_b128 {vr(CS+4*g,4)}, v24 offset:{g*32}")

    def load_bias(self, slot):
        a = self.a
        a(f"  v_lshrrev_b32 v25, 5, v0\n  v_lshlrev_b32 v25, 4, v25\n  v_add_u32 v25, {L_BIAS + slot*128}, v25")
        for g in range(4): a(f"  ds_read_b128 {vr(BI+4*g,4)}, v25 offset:{g*32}")

    def E_qk(self, acc, blk, kind):
        a = self.a
        self.load_cs(2 * kind + blk)
        if kind == 0: a(f"  v_mul_f32 v30, 0x{f2u(QSCALE):08x}, v{vRs}")
        else: a(f"  v_mov_b32 v30, v{vRs}")
        a(f"""
  s_lshl_b32 s{sT[1]}, s{sJ}, 2
  s_add_u32 s{sT[1]}, s{sT[1]}, {2*blk}
  s_lshl_b32 s{sT[1]}, s{sT[1]}, 16
  s_lshl_b32 s{sT[2]}, s{sTb}, 10
  s_add_u32 s{sT[1]}, s{sT[1]}, s{sT[2]}
  s_add_u32 s{sT[1]}, s{sT[1]}, {QF_OFF if kind == 0 else KF_OFF}
  s_add_u32 s{sT[2]}, s{sT[1]}, 65536
  s_waitcnt lgkmcnt(0)
""")
        for i in range(16): a(f"  v_fma_f32 v{acc+i}, v{CS+i}, v{vNmu}, v{acc+i}")
        for i in range(16): a(f"  v_mul_f32 v{acc+i}, v{acc+i}, v30")
        for hd in range(2):
            b = acc + 8 * hd
            a(f"  v_mul_f32 v24, v{b}, v{b}\n  v_mul_f32 v25, v{b+1}, v{b+1}")
            for i in range(1, 4): a(f"  v_fma_f32 v24, v{b+2*i}, v{b+2*i}, v24\n  v_fma_f32 v25, v{b+2*i+1}, v{b+2*i+1}, v25")
            a(f"  v_add_f32 v24, v24, v25")
            xhalf_add(a, 24, 25)
            a(f"  v_max_f32 v{vNmax}, v{vNmax}, v24")
        for i in range(8): a(f"  v_cvt_pk_bf16_f32 v{acc+i}, v{acc+2*i}, v{acc+2*i+1}")
        a(f"  buffer_store_dwordx4 {vr(acc,4)}, v{vL16}, s[{sWS}:{sWS+3}], s{sT[1]} offen{STPOL}")
        a(f"  buffer_store_dwordx4 {vr(acc+4,4)}, v{vL16}, s[{sWS}:{sWS+3}], s{sT[2]} offen{STPOL}")
        self.vm.issue("st"); self.vm.issue("st")

    def store_norm(self, kind):
        a = self.a
        wave_max_reduce(a, vNmax, 24)
        a(f"""
  s_lshl_b32 s{sT[1]}, s{sJ}, 6
  s_add_u32 s{sT[1]}, s{sT[1]}, s{sTb}
  s_lshl_b32 s{sT[1]}, s{sT[1]}, 2
  s_add_u32 s{sT[1]}, s{sT[1]}, {NRM_OFF + kind*2048}
  v_mov_b32 v24, 0
  buffer_store_dword v{vNmax}, v24, s[{sWS}:{sWS+3}], s{sT[1]} offen{STPOL}
""")
        self.vm.issue("st")

    def v_setup(self):
        a = self.a
        a(f"""
  v_and_b32 v24, 31, v0
  s_lshl_b32 s{sT[0]}, s{sWv}, 8
  s_add_u32 s{sT[0]}, s{sT[0]}, {L_RSM}
  v_lshl_add_u32 v25, v24, 2, s{sT[0]}
  ds_write_b32 v25, v{vRs}
  ds_write_b32 v25, v{vMr} offset:128
  v_lshrrev_b32 v26, 5, v0
  v_lshl_add_u32 v26, v26, 4, s{sT[0]}
  s_waitcnt lgkmcnt(0)
""")
        for g in range(4): a(f"  ds_read_b128 {vr(CS+4*g,4)}, v26 offset:{g*32}")
        for g in range(4): a(f"  ds_read_b128 {vr(BI+4*g,4)}, v26 offset:{128+g*32}")
        a(f"""
  v_lshrrev_b32 v25, 4, v24              ; t>>4
  v_lshlrev_b32 v23, 16, v25
  v_and_b32 v25, 15, v24
  v_lshl_add_u32 v23, v25, 4, v23
  v_lshrrev_b32 v25, 5, v0
  v_lshl_add_u32 v23, v25, 8, v23
  s_waitcnt lgkmcnt(0)
""")
    def E_v(self, acc, blk):
        a = self.a
        a(f"""
  s_lshl_b32 s{sT[1]}, s{sJ}, 2
  s_add_u32 s{sT[1]}, s{sT[1]}, {2*blk}
  s_lshl_b32 s{sT[1]}, s{sT[1]}, 16
  s_lshl_b32 s{sT[2]}, s{sTb}, 10
  s_add_u32 s{sT[1]}, s{sT[1]}, s{sT[2]}
  s_add_u32 s{sT[1]}, s{sT[1]}, {VF_OFF}
""")
        for i in range(16): a(f"  v_mul_f32 v{acc+i}, v{acc+i}, v{CS+i}")
        for i in range(16): a(f"  v_fma_f32 v{acc+i}, -v{BI+i}, v{30+blk}, v{acc+i}")
        for i in range(8): a(f"  v_max3_f32 v{vNmax}, |v{acc+2*i}|, |v{acc+2*i+1}|, v{vNmax}")
        for i in range(8): a(f"  v_cvt_pk_bf16_f32 v{acc+i}, v{acc+2*i}, v{acc+2*i+1}")
        a(f"  buffer_store_dwordx4 {vr(acc,4)}, v23, s[{sWS}:{sWS+3}], s{sT[1]} offen{STPOL}")
        a(f"  buffer_store_dwordx4 {vr(acc+4,4)}, v23, s[{sWS}:{sWS+3}], s{sT[1]} offen offset:512{STPOL}")
        self.vm.issue("st"); self.vm.issue("st")

    def E_act(self, acc, slot):
        a = self.a
        self.load_cs(slot); self.load_bias(slot)
        a(f"""
  s_mul_i32 s{sT[1]}, s{sTb}, 144
  s_lshr_b32 s{sT[2]}, s{sF}, 4
  s_add_u32 s{sT[1]}, s{sT[1]}, s{sT[2]}
  s_lshl_b32 s{sT[1]}, s{sT[1]}, 10
  s_add_u32 s{sT[1]}, s{sT[1]}, {AOF_OFF}
  s_waitcnt lgkmcnt(0)
""")
        for i in range(16): a(f"  v_fma_f32 v{acc+i}, v{CS+i}, v{vNmu}, v{acc+i}")
        for i in range(16): a(f"  v_fma_f32 v{acc+i}, v{acc+i}, v{vRs}, v{BI+i}")
        for i in range(16): a(f"  v_mul_f32 v{CS+i}, 0x{LOG2E:08x}, v{acc+i}")
        for i in range(16): a(f"  v_exp_f32 v{CS+i}, v{CS+i}")
        for i in range(16): a(f"  v_fma_f32 v{BI+i}, 0.5, v{CS+i}, 1.0")
        for i in range(16): a(f"  v_fma_f32 v{BI+i}, v{BI+i}, v{CS+i}, 1.0")
        for i in range(16): a(f"  v_rcp_f32 v{BI+i}, v{BI+i}")
        a("  s_nop 0")
        for i in range(16): a(f"  v_fma_f32 v{acc+i}, -v{acc+i}, v{BI+i}, v{acc+i}")
        for i in range(8): a(f"  v_cvt_pk_bf16_f32 v{acc+i}, v{acc+2*i}, v{acc+2*i+1}")
        a(f"  buffer_store_dwordx4 {vr(acc,4)}, v{vL16}, s[{sWS}:{sWS+3}], s{sT[1]} offen{STPOL}")
        a(f"  buffer_store_dwordx4 {vr(acc+4,4)}, v{vL16}, s[{sWS}:{sWS+3}], s{sT[1]} offen offset:1024{STPOL}")
        self.vm.issue("st"); self.vm.issue("st")

    def M2(self, addr):
        a = self.a; acc = ACC[0]
        off = lambda ks: (ks >> 3) * 16384 + (ks & 7) * 2048
        for ks in range(3): self.tr(WB[ks & 3], addr, off(ks))
        for ks in range(32):
            rem = min(2, 31 - ks)
            a(f"  s_waitcnt lgkmcnt({2*rem})")
            a(f"  v_mfma_f32_32x32x16_bf16 {vr(acc,16)}, {vr(WB[ks&3],4)}, {vr(XF+4*ks,4)}, {vr(acc,16) if ks else 0}")
            if ks + 3 < 32: self.tr(WB[(ks + 3) & 3], addr, off(ks + 3))
        if self.m2n == 0: stamp(a, 6)
        self.m2n += 1

    def fin(self):
        stamp(self.a, 7); stamp(self.a, 8, True); stamp_flush(self.a, 9, 0, sWv, sWS)
        self.hp.mark_at(5, "k1 end"); self.finn = getattr(self, "finn", 0) + 1; self.hp.flush(f"k1_{self.finn}", 6)
        self.a("  s_endpgm")
    def by_barrier(self):
        self.wait_vm(("p", 3), ("p", 2), ("p", 1), ("p", 0))
        self.a("  s_barrier")
        stamp(self.a, 4); self.hp.mark_at(3, "k1 postBy")
    def f0(self, base_sgpr, add_bytes):
        self.a(f"  s_add_u32 s{sF}, s{base_sgpr}, {add_bytes}\n  s_lshr_b32 s{sF}, s{sF}, 1")
    def single_addr(self):
        self.a(f"""
  s_and_b32 s{sT[5]}, s{sJ}, 1
  s_lshl_b32 s{sT[5]}, s{sT[5]}, 6
  v_subrev_u32 v17, {WR}, v{vWp[0]}
  v_xor_b32 v17, s{sT[5]}, v17
""")

    def emit(self):
        a = self.a; n = self.name
        self.prologue()
        vm0 = list(self.vm.q)
        a(f"""
  s_cmp_eq_u32 s{sHalf}, 1
  s_cbranch_scc1 {n}_T1
  s_cmp_eq_u32 s{sTy}, 1
  s_cbranch_scc1 {n}_N
""")
        self.pass1("T", 0); self.stats()
        self.cs_final([0, 1], 4)
        self.E_qk(ACC[0], 0, 0); self.E_qk(ACC[1], 1, 0); self.store_norm(0)
        self.by_barrier()
        self.single_addr(); self.cs_phase([(vWp[0], 4), (vWp[1], 5), (17, 6)])
        self.cs_final([4, 6], 8)
        self.f0(sF0, 0)
        self.M2(vWp[0]); self.E_act(ACC[0], 4)
        a(f"  s_and_b32 s{sT[5]}, s{sJ}, 1\n  s_lshl_b32 s{sT[5]}, s{sT[5]}, 6\n  s_add_u32 s{sF}, s{sF0+1}, s{sT[5]}\n  s_lshr_b32 s{sF}, s{sF}, 1")
        self.M2(17); self.E_act(ACC[0], 6)
        self.fin()
        a.label(f"{n}_T1"); self.vm.q = list(vm0)
        self.pass1("T", 1); self.stats()
        vm1 = list(self.vm.q)
        a(f"  s_cmp_eq_u32 s{sTy}, 1\n  s_cbranch_scc1 {n}_YB")
        self.cs_final([2, 3], 4)
        self.E_qk(ACC[0], 0, 1); self.E_qk(ACC[1], 1, 1); self.store_norm(1)
        self.by_barrier()
        self.single_addr(); self.cs_phase([(vWp[0], 4), (vWp[1], 5), (17, 6)])
        self.cs_final([5], 8)
        self.f0(sF0, 64)
        self.M2(vWp[1]); self.E_act(ACC[0], 5)
        self.fin()
        a.label(f"{n}_YB"); self.vm.q = list(vm1)
        self.cs_final([2, 3], 4)
        self.f0(sF0, 128); self.E_act(ACC[0], 2)
        self.by_barrier()
        self.cs_phase([(vWp[0], 4), (vWp[1], 5)])
        self.f0(sF0, 128 + 64); self.E_act(ACC[1], 3)
        self.cs_final([5], 8)
        self.f0(sF0, 256 + 64)
        self.M2(vWp[1]); self.E_act(ACC[0], 5)
        self.fin()
        a.label(f"{n}_N"); self.vm.q = list(vm0)
        self.pass1("N", 0); self.stats()
        self.cs_final([0, 1], 4, keep=[30, 31])
        self.v_setup(); self.E_v(ACC[0], 0); self.E_v(ACC[1], 1); self.store_norm(2)
        self.by_barrier()
        self.cs_phase([(vWp[0], 4), (vWp[1], 5)])
        self.cs_final([4], 8)
        self.f0(sF0, 256)
        self.M2(vWp[0]); self.E_act(ACC[0], 4)
        self.fin()
        a.label(f"{n}_end")
        a("  s_endpgm")

def emit_k1(a, name):
    K1(a, name).emit()
```

```python
from asmlib import *
from common import *
import hprof
WHICH = 0
RED_STRIDE = 64 * 272
K3_LDS = 8 * RED_STRIDE
ACC = 64
FB = 128
DEPTH = 4
sWS, sX, sO = 8, 12, 16
sW, sTbp, sNbp = 20, 21, 22
def srd(a, s, ptr, size):
    a(f"  s_mov_b32 s{s}, s{ptr}\n  s_and_b32 s{s+1}, s{ptr+1}, 0xffff\n  s_mov_b32 s{s+2}, {size}\n  s_mov_b32 s{s+3}, 0x00020000")

def reduce_store(a, acc, vL, sW, sTbp, sNbp, sX, sO, vX):
    a(f"""
  v_and_b32 v2, 31, v{vL}
  v_lshrrev_b32 v3, 5, v{vL}
  v_mul_u32_u24 v2, 272, v2
  v_lshl_add_u32 v2, v3, 4, v2
  s_mul_i32 s30, s{sW}, {RED_STRIDE}
  v_add_u32 v2, s30, v2
""")
    for b in range(2):
        for c in range(2):
            for g in range(4):
                a(f"  ds_write_b128 v2, {vr(acc+16*(2*b+c)+4*g,4)} offset:{c*32*272 + (32*b+8*g)*4}")
    a(f"""
  s_lshl_b32 s30, s{sW}, 6
  v_add_u32 v4, s30, v{vL}               ; tid
  v_lshrrev_b32 v5, 3, v4
  v_and_b32 v6, 7, v4
  v_mul_u32_u24 v5, 272, v5
  v_lshl_add_u32 v5, v6, 5, v5
  s_waitcnt lgkmcnt(0)
  s_barrier
""")
    a(f"  v_add_u32 v6, {4*RED_STRIDE}, v5")
    for w in range(8):
        base = 5 if w < 4 else 6
        off = (w & 3) * RED_STRIDE
        a(f"  ds_read_b128 {vr(acc+8*w,4)}, v{base} offset:{off}")
        a(f"  ds_read_b128 {vr(acc+8*w+4,4)}, v{base} offset:{off+16}")
    a("  s_waitcnt lgkmcnt(8)")
    for w in range(1, 4):
        for i in range(4): a(f"  v_pk_add_f32 {vr(acc+2*i,2)}, {vr(acc+2*i,2)}, {vr(acc+8*w+2*i,2)}")
    a("  s_waitcnt lgkmcnt(0)")
    for w in range(4, 8):
        for i in range(4): a(f"  v_pk_add_f32 {vr(acc+2*i,2)}, {vr(acc+2*i,2)}, {vr(acc+8*w+2*i,2)}")
    for i in range(4):
        a(f"  v_lshlrev_b32 v8, 16, v{vX+i}\n  v_and_b32 v9, 0xffff0000, v{vX+i}")
        a(f"  v_pk_add_f32 {vr(acc+2*i,2)}, {vr(acc+2*i,2)}, v[8:9]")
    for i in range(4): a(f"  v_cvt_pk_bf16_f32 v{acc+i}, v{acc+2*i}, v{acc+2*i+1}")

def emit_k3(a, name):
    a(f"""
  s_cmp_ge_u32 s2, 256
  s_cbranch_scc1 {name}_end
""")
    hp = hprof.HP(a, 2, sW); hp.mark_at(0, "k3 start")
    a(f"""
  s_load_dwordx2 s[4:5], s[0:1], 72
  s_load_dwordx2 s[6:7], s[0:1], 0
  s_load_dwordx2 s[24:25], s[0:1], 56
  v_lshrrev_b32 v1, 6, v0
  v_and_b32 v10, 63, v0
  v_readfirstlane_b32 s{sW}, v1
  v_lshlrev_b32 v11, 4, v10
  s_and_b32 s26, s2, 7
  s_lshr_b32 s27, s2, 3
  s_lshl_b32 s{sTbp}, s26, 2
  s_and_b32 s28, s27, 3
  s_add_u32 s{sTbp}, s{sTbp}, s28
  s_lshr_b32 s{sNbp}, s27, 2
  ; soffsets
  s_mul_i32 s28, s{sW}, 18
  s_mul_i32 s32, s{sNbp}, 288
  s_add_u32 s32, s32, s28
  s_lshl_b32 s32, s32, 10
  s_add_u32 s32, s32, {WF_OFF}           ; W0
  s_add_u32 s33, s32, {144*1024}         ; W1
  s_mul_i32 s34, s{sTbp}, 288
  s_add_u32 s34, s34, s28
  s_lshl_b32 s34, s34, 10
  s_add_u32 s34, s34, {AOF_OFF}          ; A0
  s_add_u32 s35, s34, {144*1024}         ; A1
  v_lshrrev_b32 v2, 3, v0
  v_and_b32 v3, 7, v0
  v_lshlrev_b32 v2, 10, v2
  v_lshl_add_u32 v12, v3, 4, v2
  s_lshl_b32 s29, s{sTbp}, 16
  s_lshl_b32 s30, s{sNbp}, 7
  s_add_u32 s29, s29, s30
  s_waitcnt lgkmcnt(0)
""")
    srd(a, sWS, 4, WS_SIZE); srd(a, sX, 6, 2097152); srd(a, sO, 24, 2097152)
    vm = Cnt(63)
    def loads(ks):
        st = FB + 16 * (ks % DEPTH)
        q, r = divmod(ks, 4)
        if r == 0 and q > 0:
            for s in (32, 33, 34, 35): a(f"  s_add_u32 s{s}, s{s}, 4096")
        for i, s in enumerate((32, 33, 34, 35)):
            a(f"  buffer_load_dwordx4 {vr(st+4*i,4)}, v11, s[{sWS}:{sWS+3}], s{s} offen offset:{r*1024}")
            vm.issue(ks)
    for ks in range(DEPTH): loads(ks)
    a(f"  buffer_load_dwordx4 v[14:17], v12, s[{sX}:{sX+3}], s29 offen"); vm.issue("x")
    for r in range(64): a(f"  v_mov_b32 v{ACC+r}, 0")
    for ks in range(18):
        st = FB + 16 * (ks % DEPTH)
        a(f"  s_waitcnt vmcnt({vm.need(ks)})")
        for b in range(2):
            for c in range(2):
                d = ACC + 16 * (2 * b + c)
                a(f"  v_mfma_f32_32x32x16_bf16 {vr(d,16)}, {vr(st+4*b,4)}, {vr(st+8+4*c,4)}, {vr(d,16)}")
        if ks + DEPTH < 18: loads(ks + DEPTH)
    a("  s_nop 7\n  s_nop 7")
    reduce_store(a, ACC, 10, sW, sTbp, sNbp, sX, sO, 14)
    a(f"  buffer_store_dwordx4 {vr(ACC,4)}, v12, s[{sO}:{sO+3}], s29 offen")
    hp.mark_at(1, "k3 end"); hp.flush("k3", 2); hp.spin("k3", WHICH)
    a("  s_endpgm")
    a.label(f"{name}_end")
    a("  s_endpgm")
```

```python
import sys, os
from asmlib import *
from mkfile import *
import k1, attn, k3, hprof
attn.MODE = "duo"
def build(check=True):
    ks = []
    for (label, fn, nm, lds) in (("proj_kernel", k1.emit_k1, "k1", k1.K1_LDS), ("attn_kernel", attn.emit_attn, "att", attn.ATT_LDS), ("outp_kernel", k3.emit_k3, "k3", k3.K3_LDS)):
        a = Asm(); fn(a, nm); txt = a.text()
        if check: check_hazards(txt)
        ks.append((label, txt, 256, 512, lds, 256, 102 if hprof.ENABLED else 96))
    return make_file(ks)
if __name__ == "__main__":
    if "--sc1" in sys.argv: k1.STPOL = attn.STPOL = " sc1"; sys.argv.remove("--sc1")
    if "--nt" in sys.argv: k1.STPOL = attn.STPOL = " nt"; sys.argv.remove("--nt")
    if "--pf" in sys.argv: k1.PREFETCH = True; sys.argv.remove("--pf")
    if len(sys.argv) > 1 and sys.argv[1] == "--prof":
        hprof.ENABLED = True
        pts = sys.argv[2:]
        os.makedirs("prof", exist_ok=True)
        for p in pts:
            k, h, i = map(int, p.split(":"))
            k3.WHICH = hprof.index(k, h, i)
            open(f"prof/P_{k}_{h}_{i}.s", "w").write(build(False))
            print(f"prof/P_{k}_{h}_{i}.s", hprof.NAMES.get((k, i)))
    else:
        out = sys.argv[1] if len(sys.argv) > 1 else "../cdna_kernels/" + KNAME + ".s"
        open(out, "w").write(build()); print("wrote", out)
```
